```python
import torch

def _softmax(x, axis=-1):
    return torch.softmax(x, dim=axis)
def _gelu(x):
    return torch.nn.functional.gelu(x, approximate="tanh")
def _silu(x):
    return torch.nn.functional.silu(x)
def _sigmoid(x):
    return torch.sigmoid(x)
def _layernorm(x, axis=-1, eps=1e-5):
    m = x.mean(dim=axis, keepdim=True)
    v = x.var(dim=axis, keepdim=True, unbiased=False)
    return (x - m) / torch.sqrt(v + eps)
def _scatter_add(tgt, idx, src, axis=0):
    return tgt.clone().index_add_(axis, idx, src)
def _segment_sum(src, seg, n):
    out = torch.zeros((n,) + src.shape[1:], dtype=src.dtype)
    return out.index_add_(0, seg, src)
def _pad(x, pw):
    flat = tuple(v for pair in reversed(pw) for v in pair)
    return torch.nn.functional.pad(x, flat)

kernel_name = 'interleave_layers__gqa_block_cached__glu_gated_swiglu__decode'

def setup_inputs():

    _w = (lambda a: (lambda t: t.to(torch.bfloat16) if t.is_floating_point() else t)(torch.as_tensor(a)))
    def _A_setup():
        B, Sq, D = 4, 1, 576
        Hq, Hkv, Sk, Dh = 32, 16, 4096, 128
        assert Hq % Hkv == 0, (Hq, Hkv)
        return {
            "x": _w((lambda *s: torch.randn(*s, dtype=torch.bfloat16) * 0.05)(B, Sq, D)),
            "k_cache": _w((lambda *s: torch.randn(*s, dtype=torch.bfloat16) * 0.8)(B, Hkv, Sk, Dh)),
            "v_cache": _w((lambda *s: torch.randn(*s, dtype=torch.bfloat16) * 0.8)(B, Hkv, Sk, Dh)),
            "wq": _w((lambda *s: torch.randn(*s, dtype=torch.bfloat16) * 0.8)(D, Hq * Dh) * (D ** -0.5)),
            "wo": _w((lambda *s: torch.randn(*s, dtype=torch.bfloat16) * 0.8)(Hq * Dh, D) * ((Hq * Dh) ** -0.5)),
        }
    _A_in = _A_setup()

    def _B_setup():
        B, S, D, F = 4, 1, 576, 4608
        return {
            "x": _w((lambda *s: torch.randn(*s, dtype=torch.bfloat16) * 0.05)(B, S, D)),
            "w1": _w((lambda *s: torch.randn(*s, dtype=torch.bfloat16) * 0.2)(D, F) * (2.0 / D) ** 0.5),
            "w3": _w((lambda *s: torch.randn(*s, dtype=torch.bfloat16) * 0.2)(D, F) * (2.0 / D) ** 0.5),
            "w2": _w((lambda *s: torch.randn(*s, dtype=torch.bfloat16) * 0.2)(F, D) * (2.0 / F) ** 0.5),
        }
    _B_in = _B_setup()

    return {
        "A_x": _A_in["x"],
        "A_k_cache": _A_in["k_cache"],
        "A_v_cache": _A_in["v_cache"],
        "A_wq": _A_in["wq"],
        "A_wo": _A_in["wo"],
        "B_x": _B_in["x"],
        "B_w1": _B_in["w1"],
        "B_w3": _B_in["w3"],
        "B_w2": _B_in["w2"],
    }

def reference(A_x, A_k_cache, A_v_cache, A_wq, A_wo, B_x, B_w1, B_w3, B_w2):
    def _A_ref(x, k_cache, v_cache, wq, wo):
        B, Sq, D = x.shape
        Hq, Dh = 32, 128
        Hkv = k_cache.shape[1]
        rep = Hq // Hkv
        q = (lambda x, *d: x.permute(*d))((x @ wq).reshape(B, Sq, Hq, Dh), 0, 2, 1, 3)
        k = (lambda x, n, axis: torch.repeat_interleave(x, n, dim=axis))(k_cache, rep, axis=1)
        v = (lambda x, n, axis: torch.repeat_interleave(x, n, dim=axis))(v_cache, rep, axis=1)
        scores = torch.einsum("bhqd,bhkd->bhqk", q, k) * (Dh ** -0.5)
        p = _softmax(scores, axis=-1)
        o = torch.einsum("bhqk,bhkd->bhqd", p, v)
        return (lambda x, *d: x.permute(*d))(o, 0, 2, 1, 3).reshape(B, Sq, Hq * Dh) @ wo

    def _B_ref(x, w1, w3, w2):
        gate = torch.einsum("bsd,df->bsf", x, w1)
        up = torch.einsum("bsd,df->bsf", x, w3)
        h = _silu(gate) * up
        out = torch.einsum("bsf,fd->bsd", h, w2)
        return out

    x = A_x
    x = x + _A_ref(_layernorm(x, axis=-1), A_k_cache, A_v_cache, A_wq, A_wo)
    x = x + _B_ref(_layernorm(x, axis=-1), B_w1, B_w3, B_w2)
    x = x + _A_ref(_layernorm(x, axis=-1), A_k_cache, A_v_cache, A_wq, A_wo)
    x = x + _B_ref(_layernorm(x, axis=-1), B_w1, B_w3, B_w2)
    return x
```

```python
import re

TRANS = ("v_exp_f32", "v_log_f32", "v_rcp_f32", "v_rsq_f32", "v_sqrt_f32", "v_sin_f32", "v_cos_f32")
_REG = re.compile(r"(?<![\w.])(-?)(abs\()?([vas])(?:(\d+)|\[(\d+):(\d+)\])\)?")


def regs_of(op):
    op = op.strip()
    out = []
    if op in ("vcc", "exec", "m0", "vcc_lo", "vcc_hi", "exec_lo", "exec_hi"):
        return [(op.split("_")[0], 0)]
    for m in _REG.finditer(op):
        k = m.group(3)
        if m.group(4) is not None:
            out.append((k, int(m.group(4))))
        else:
            out += [(k, i) for i in range(int(m.group(5)), int(m.group(6)) + 1)]
    return out


class Ins:
    __slots__ = ("text", "op", "kind", "dst", "src", "srcc", "dpp", "trans", "states", "wide_store")

    def __init__(self, text):
        self.text = text
        t = text.split(";")[0].strip()
        parts = t.split(None, 1)
        self.op = parts[0]
        rest = parts[1] if len(parts) > 1 else ""
        ops = [o.strip() for o in rest.split(",")] if rest else []
        if ops:
            last = ops[-1].split()
            mods = " ".join(last[1:]) if len(last) > 1 else ""
            ops[-1] = last[0] if last else ""
        else:
            mods = ""
        op = self.op
        self.dst, self.src, self.srcc = [], [], []
        self.dpp = "_dpp" in op or "row_" in rest or "quad_perm" in rest
        self.trans = any(op.startswith(x) for x in TRANS)
        self.states = 1
        self.wide_store = False
        if op == "s_nop":
            self.kind = "nop"
            self.states = int(ops[0], 0) + 1
        elif op.startswith("v_mfma"):
            self.kind = "mfma"
            self.dst = regs_of(ops[0])
            self.src = regs_of(ops[1]) + regs_of(ops[2])
            self.srcc = regs_of(ops[3])
        elif op.startswith("v_readfirstlane") or op.startswith("v_readlane"):
            self.kind = "readlane"
            self.dst = regs_of(ops[0])
            self.src = sum((regs_of(o) for o in ops[1:]), [])
        elif op.startswith("v_permlane"):
            self.kind = "permlane"
            self.dst = regs_of(ops[0]) + regs_of(ops[1])
            self.src = list(self.dst)
        elif op.startswith("v_cmp"):
            self.kind = "valu"
            self.dst = regs_of(ops[0])
            self.src = sum((regs_of(o) for o in ops[1:]), [])
        elif op.startswith("v_"):
            self.kind = "valu"
            self.dst = regs_of(ops[0])
            self.src = sum((regs_of(o) for o in ops[1:]), [])
            if op.startswith("v_fmac") or op.startswith("v_dot2c") or (self.dpp and op.startswith("v_mov")):
                self.src += self.dst
            if op.startswith("v_cndmask") and len(ops) == 3:
                self.src.append(("vcc", 0))
        elif op.startswith("buffer_") or op.startswith("global_"):
            self.kind = "vmem"
            is_lds = " lds" in (" " + rest + " ")
            if "_load" in op and not is_lds:
                self.dst = regs_of(ops[0])
                self.src = sum((regs_of(o) for o in ops[1:]), [])
            else:
                self.src = sum((regs_of(o) for o in ops), [])
                if is_lds:
                    self.src.append(("m0", 0))
                if "store_dwordx4" in op or "store_dwordx3" in op:
                    self.wide_store = True
                    self.srcc = regs_of(ops[0]) if op.startswith("buffer_") else regs_of(ops[1])
                if "atomic" in op and "sc0" in mods:
                    self.dst = regs_of(ops[0])
        elif op.startswith("ds_"):
            self.kind = "ds"
            if op.startswith("ds_read") or "permute" in op or "swizzle" in op:
                self.dst = regs_of(ops[0])
                self.src = sum((regs_of(o) for o in ops[1:]), [])
            else:
                self.src = sum((regs_of(o) for o in ops), [])
        elif op.startswith("s_"):
            self.kind = "salu"
            if op.startswith(("s_cmp", "s_cbranch", "s_branch", "s_waitcnt", "s_barrier", "s_sleep", "s_endpgm", "s_setprio", "s_bitcmp", "s_setpc")):
                self.src = sum((regs_of(o) for o in ops), [])
            elif ops:
                self.dst = regs_of(ops[0])
                self.src = sum((regs_of(o) for o in ops[1:]), [])
        else:
            raise ValueError("unknown instruction: " + text)


def need(p, c):
    n = 0
    pd = set(p.dst)
    cs, cd, cc = set(c.src), set(c.dst), set(c.srcc)
    isvalu_p = p.kind in ("valu", "permlane", "readlane")
    isvalu_c = c.kind in ("valu", "permlane", "readlane")
    if isvalu_p:
        vd = {r for r in pd if r[0] in "va"}
        sd = {r for r in pd if r[0] in ("s", "vcc")}
        if c.kind == "mfma" and vd & (cs | cc):
            n = max(n, 2)
        if c.kind == "valu" and c.dpp and vd & cs:
            n = max(n, 2)
        if c.kind == "permlane" and vd & cs:
            n = max(n, 2)
        if c.kind == "readlane" and vd & cs:
            n = max(n, 1)
        if p.trans and isvalu_c and not c.trans and vd & cs:
            n = max(n, 1)
        if p.trans and c.kind in ("vmem", "ds", "mfma") and vd & cs:
            n = max(n, 1)
        if sd:
            if isvalu_c and sd & cs:
                n = max(n, 4 if c.kind == "readlane" else 2)
            if c.kind == "vmem" and sd & cs:
                n = max(n, 5)
    if p.op.startswith("v_dot"):
        if c.op == p.op:
            ab = set(c.src) - set(c.dst)
            if pd & ab:
                n = max(n, 3)
        elif pd & (cs | cd | cc):
            n = max(n, 3)
    if p.kind == "mfma":
        if c.kind == "mfma":
            if pd & cs:
                n = max(n, 8)
            if pd & cc and set(c.srcc) != pd:
                n = max(n, 6)
            if pd & cd and not (pd & cc):
                n = max(n, 0)
        elif isvalu_c:
            if pd & (cs | cd):
                n = max(n, 8)
            if set(p.srcc) & cd:
                n = max(n, 3)
        elif c.kind in ("vmem", "ds"):
            if pd & (cs | cd):
                n = max(n, 8)
    if p.kind == "vmem" and p.wide_store:
        if set(p.srcc) & cd:
            n = max(n, 2)
    if p.kind == "salu" and ("m0", 0) in pd and c.kind == "vmem" and ("m0", 0) in cs:
        n = max(n, 1)
    return n


class Asm:
    def __init__(self):
        self.lines = []
        self._uid = 0

    def e(self, s):
        for ln in s.split("\n"):
            ln = ln.strip()
            if ln:
                self.lines.append(ln)

    def uid(self, p="L"):
        self._uid += 1
        return f"{p}_{self._uid}"

    def label(self, name):
        self.lines.append(name + ":")

    def finish(self):
        out = []
        hists = [[]]
        pending = {}
        nnop = 0
        for ln in self.lines:
            if ln.startswith(";") or ln.startswith("."):
                out.append(ln)
                continue
            if ln.endswith(":"):
                lab = ln[:-1]
                hists = hists + pending.pop(lab, [])
                out.append(ln)
                continue
            ins = Ins(ln)
            req = 0
            for h in hists:
                for p, age in h:
                    req = max(req, need(p, ins) - age)
            while req > 0:
                k = min(req, 16)
                out.append(f"s_nop {k-1}")
                nnop += 1
                for h in hists:
                    for x in h:
                        x[1] += k
                req -= k
            out.append(ln)
            for h in hists:
                for x in h:
                    x[1] += ins.states
                h.append([ins, 0])
                h[:] = [x for x in h if x[1] < 12]
            if len(hists) > 1:
                merged = {}
                for h in hists:
                    for p, age in h:
                        key = id(p)
                        if key not in merged or merged[key][1] > age:
                            merged[key] = [p, age]
                hists = [list(merged.values())]
            if ins.op.startswith("s_cbranch") or ins.op == "s_branch":
                tgt = ln.split()[1]
                pending.setdefault(tgt, []).append([[p, a] for p, a in hists[0]])
            if ins.op in ("s_branch", "s_endpgm", "s_setpc_b64"):
                hists = [[]]
        self.nnop = nnop
        return "\n".join(out) + "\n"
```

```python
import sys, math
from asmlib import Asm

KN = "interleave_layers__gqa_block_cached__glu_gated_swiglu__decode_kernel"

V_BASE, K15_BASE, SH_BASE, ST_BASE, LDS_TOTAL = 0, 131072, 147456, 155648, 163840
SH_STATS = SH_BASE + 4608
LREG = 65536
Q_OFF, Q_SZ = 0, 4096
O_OFF, O_SZ = 8192, 16384
ML_OFF, ML_SZ = 40960, 512
X_OFF, X_SZ = 41984, 4608
H_OFF, H_SZ = 55808, 4608
Y_OFF, Y_SZ = 524288, 147456
CLR_PER_WG = 4352
STAMP_OFF = 4 << 20
sW = 3
SK, SV, SWQ, SWO, SW1, SW3, SW2, SX, SOUT, SWS, SDBG = 4, 8, 12, 16, 20, 24, 28, 32, 36, 40, 44
sk, sj, sLayer, sLocal, sLimit, sCnt, sL, sKV, sT0, sT1, sT2, sT3, sT4, sRot, sC, sCt = range(48, 64)
sStamp = 64
sM4, sM2 = 96, 98
def srd(r): return f"s[{r}:{r+3}]"
vLane, vL16, vTR0, vFrag, vStage, vTRW, vCS = 0, 1, 2, 3, 4, 5, 6
vt0, vt1, vt2, vt3, vt4, vt5 = 10, 11, 12, 13, 14, 15
R_QUADS = [f"v[{16+4*i}:{19+4*i}]" for i in range(14)] + [f"a[{240+4*i}:{243+4*i}]" for i in range(4)]
T0 = 72
def vq(b): return f"v[{b}:{b+3}]"
def vp(b): return f"v[{b}:{b+1}]"
def half(q, i):
    k, r = q[0], q[2:-1].split(":")
    lo = int(r[0]) + 2 * i
    return f"{k}[{lo}:{lo+1}]"
DPP = "row_mask:0xf bank_mask:0xf"
LOG2E = 1.4426950408889634
import struct
def f32(x): return "0x%08x" % struct.unpack("<I", struct.pack("<f", x))[0]


class Gen:
    def __init__(self, stamps=False, force_global=False, nt=True, limit=0x200000):
        self.limit = limit
        self.a = Asm()
        self.e = self.a.e
        self.stamps = stamps
        self.nstamp = 0
        self.stamp_names = []
        self.force_global = force_global
        self.nt = " nt" if nt else ""

    def stamp(self, name):
        if not self.stamps:
            return
        i = self.nstamp
        self.nstamp += 1
        self.stamp_names.append(name)
        e = self.e
        e(f"s_memrealtime s[100:101]")
        e("s_waitcnt lgkmcnt(0)")
        e(f"v_mov_b32 v{vt5}, s100")
        e(f"s_lshl_b32 s100, s{sLayer}, 7")
        e(f"s_add_u32 s100, s100, s95")
        e(f"s_mov_b64 s[92:93], exec")
        e("s_mov_b64 exec, 1")
        e(f"v_mov_b32 v{vt4}, {4*i}")
        e(f"buffer_store_dword v{vt5}, v{vt4}, {srd(SWS)}, s100 offen")
        e("s_mov_b64 exec, s[92:93]")

    def maxchain(self, regs, dst):
        e = self.e
        regs = list(regs)
        if len(regs) == 1:
            return regs[0]
        if len(regs) == 2:
            e(f"v_max_u32 v{dst}, v{regs[0]}, v{regs[1]}")
            return dst
        e(f"v_max3_u32 v{dst}, v{regs[0]}, v{regs[1]}, v{regs[2]}")
        rr = regs[3:]
        while rr:
            if len(rr) >= 2:
                e(f"v_max3_u32 v{dst}, v{dst}, v{rr[0]}, v{rr[1]}"); rr = rr[2:]
            else:
                e(f"v_max_u32 v{dst}, v{dst}, v{rr[0]}"); rr = rr[1:]
        return dst

    def poll(self, loads, check, mask=None, sleep=0, between=None, tmp=vt5):
        e = self.e
        lp, ld = self.a.uid("Lpoll"), self.a.uid("Lpdone")
        if mask: e(f"s_mov_b64 exec, {mask}")
        e(f"s_mov_b32 s{sCnt}, 0")
        if between is not None:
            for l in loads: e(l)
            if mask: e("s_mov_b64 exec, -1")
            between()
            if mask: e(f"s_mov_b64 exec, {mask}")
            lchk = self.a.uid("Lpchk")
            e(f"s_branch {lchk}")
        self.a.label(lp)
        for l in loads: e(l)
        if between is not None: self.a.label(lchk)
        e("s_waitcnt vmcnt(0)")
        r = self.maxchain(check, tmp)
        e(f"v_cmp_eq_u32 vcc, -1, v{r}")
        e(f"s_cbranch_vccz {ld}")
        if sleep: e(f"s_sleep {sleep}")
        e(f"s_add_u32 s{sCnt}, s{sCnt}, 1")
        e(f"s_cmp_lt_u32 s{sCnt}, s{sLimit}")
        e(f"s_cbranch_scc1 {lp}")
        e(f"s_mov_b32 s{sLimit}, 0")
        self.a.label(ld)
        if mask: e("s_mov_b64 exec, -1")

    def pub_local(self, store):
        e = self.e
        l1, l2 = self.a.uid("Lpl"), self.a.uid("Lpe")
        e(f"s_cmp_eq_u32 s{sLocal}, 1")
        e(f"s_cbranch_scc1 {l1}")
        e(store + " sc1")
        e(f"s_branch {l2}")
        self.a.label(l1)
        e(store)
        self.a.label(l2)

    def xrow_all(self, r, t, op):
        e = self.e
        e(f"v_mov_b32 v{t}, v{r}")
        e(f"v_permlane16_swap_b32 v{r}, v{t}")
        e(f"{op} v{r}, v{r}, v{t}")
        e(f"v_mov_b32 v{t}, v{r}")
        e(f"v_permlane32_swap_b32 v{r}, v{t}")
        e(f"{op} v{r}, v{r}, v{t}")

    def wload_form1(self, quads, s_rd, stride, s_base, vaddr):
        e = self.e
        for i, q in enumerate(quads):
            if i == 0: e(f"s_mov_b32 s{sT0}, s{s_base}")
            else: e(f"s_add_u32 s{sT0}, s{sT0}, {32*stride}")
            e(f"buffer_load_dwordx4 {q}, v{vaddr}, {srd(s_rd)}, s{sT0} offen")

    def vaddr_form1(self, v, stride):
        e = self.e
        e(f"v_lshrrev_b32 v{v}, 1, v{vLane}")
        e(f"s_mov_b32 s{sT0}, {stride}")
        e(f"v_mul_lo_u32 v{v}, v{v}, s{sT0}")
        e(f"v_and_b32 v{vt5}, 1, v{vLane}")
        e(f"v_lshl_add_u32 v{v}, v{vt5}, 4, v{v}")

    def transpose_form1(self, quads):
        e = self.e
        for i in range(0, len(quads), 2):
            grp = quads[i:i + 2]
            for u, q in enumerate(grp):
                e(f"ds_write_b128 v{vStage}, {q} offset:{u*1024}")
            for u, q in enumerate(grp):
                for h in range(2):
                    e(f"ds_read_b64_tr_b16 {half(q, h)}, v{vTRW} offset:{u*1024 + h*128}")

    def colsum(self, quads, dst, ones):
        e = self.e
        for i in range(4): e(f"v_mov_b32 v{ones+i}, 0x3f803f80")
        for i, q in enumerate(quads):
            e(f"v_mfma_f32_16x16x32_bf16 {vq(dst)}, {q}, {vq(ones)}, {'0' if i == 0 else vq(dst)}")

    def wq_prefetch_issue(self):
        e = self.e
        self.vaddr_form1(vt0, 8192)
        e(f"s_mul_i32 s{sT1}, s{sW}, 9"); e(f"s_add_u32 s{sT1}, s{sT1}, 1"); e(f"s_lshr_b32 s{sT1}, s{sT1}, 1")
        e(f"s_lshl_b32 s{sT1}, s{sT1}, 18")
        e(f"s_lshl_b32 s{sT2}, s{sk}, 10"); e(f"s_add_u32 s{sT1}, s{sT1}, s{sT2}")
        e(f"s_lshl_b32 s{sT2}, s{sj}, 5"); e(f"s_add_u32 s{sT1}, s{sT1}, s{sT2}")
        self.wload_form1([vq(T0 + 4 * i) for i in range(5)], SWQ, 8192, sT1, vt0)

    def wq_prefetch_finish(self):
        e = self.e
        qs = [vq(T0 + 4 * i) for i in range(5)]
        self.transpose_form1(qs)
        e("s_waitcnt lgkmcnt(0)")
        l4, ld = self.a.uid("Lcs4"), self.a.uid("Lcsd")
        e(f"s_bitcmp1_b32 s{sW}, 0"); e(f"s_cbranch_scc1 {l4}")
        self.colsum(qs, 92, 100)
        e(f"s_branch {ld}")
        self.a.label(l4)
        self.colsum(qs[:4], 92, 100)
        self.a.label(ld)

    def gshare(self, soff, stats, from_input=False, sleep=0):
        e = self.e
        G0, G1 = 108, 112
        l1, ld = self.a.uid("Lg1"), self.a.uid("Lgd")
        if from_input:
            e(f"v_and_b32 v{vt0}, 3, v{vLane}"); e(f"v_mul_u32_u24 v{vt0}, 1152, v{vt0}")
            e(f"v_lshrrev_b32 v{vt1}, 2, v{vLane}"); e(f"v_lshl_add_u32 v{vt0}, v{vt1}, 4, v{vt0}")
            e(f"s_lshl_b32 s{sT0}, s{sW}, 8")
            e(f"buffer_load_dwordx4 {vq(G0)}, v{vt0}, {srd(SX)}, s{sT0} offen")
            e(f"buffer_load_dwordx4 {vq(G1)}, v{vt0}, {srd(SX)}, 0 offen offset:1024")
            return
        e(f"s_lshl_b32 s{sT0}, s{sW}, 10"); e(f"s_add_u32 s{sT0}, s{sT0}, s{soff}")
        e(f"s_cmp_eq_u32 s{sW}, 0"); e(f"s_cbranch_scc0 {l1}")
        e(f"v_and_b32 v{vt0}, 0x1ff, v{vL16}")
        e(f"s_add_u32 s{sT1}, s{soff}, 4096")
        self.poll([f"buffer_load_dwordx4 {vq(G0)}, v{vL16}, {srd(SWS)}, s{sT0} offen sc1",
                   f"buffer_load_dwordx4 {vq(G1)}, v{vt0}, {srd(SWS)}, s{sT1} offen sc1"],
                  list(range(G0, G0 + 8)), sleep=sleep)
        e(f"s_branch {ld}")
        self.a.label(l1)
        self.poll([f"buffer_load_dwordx4 {vq(G0)}, v{vL16}, {srd(SWS)}, s{sT0} offen sc1"], list(range(G0, G0 + 4)), sleep=sleep)
        self.a.label(ld)
        self.gshare_write(stats)

    def gshare_write(self, stats):
        e = self.e
        G0, G1 = 108, 112
        l1, ld = self.a.uid("Lgw1"), self.a.uid("Lgwd")
        e(f"s_lshl_b32 s{sT0}, s{sW}, 10"); e(f"s_add_u32 s{sT0}, s{sT0}, {SH_BASE}")
        e(f"v_add_u32 v{vt0}, s{sT0}, v{vL16}")
        e(f"ds_write_b128 v{vt0}, {vq(G0)}")
        if stats:
            e(f"v_mov_b32 v{vt2}, 0"); e(f"v_mov_b32 v{vt3}, 0"); e(f"v_mov_b32 v{vt4}, 0x3f803f80")
            for i in range(4):
                e(f"v_dot2c_f32_bf16 v{vt2}, v{G0+i}, v{vt4}")
                e(f"v_dot2c_f32_bf16 v{vt3}, v{G0+i}, v{G0+i}")
        e(f"s_cmp_eq_u32 s{sW}, 0"); e(f"s_cbranch_scc0 {l1}")
        e("s_mov_b32 exec_hi, 0")
        e(f"ds_write_b128 v{vt0}, {vq(G1)} offset:4096")
        if stats:
            for i in range(4):
                e(f"v_dot2c_f32_bf16 v{vt2}, v{G1+i}, v{vt4}")
                e(f"v_dot2c_f32_bf16 v{vt3}, v{G1+i}, v{G1+i}")
        e("s_mov_b64 exec, -1")
        self.a.label(l1)
        if stats:
            e(f"s_lshl_b32 s{sT0}, s{sW}, 9"); e(f"s_add_u32 s{sT0}, s{sT0}, {SH_STATS}")
            e(f"v_lshl_add_u32 v{vt0}, v{vLane}, 3, s{sT0}")
            e(f"ds_write_b64 v{vt0}, {vp(vt2)}")
        e("s_waitcnt lgkmcnt(0)")
        e("s_barrier")

    def stats_seq(self):
        s = []
        s.append(f"v_lshlrev_b32 v{vt4}, 3, v{vLane}")
        s.append(f"ds_read_b64 {vp(vt0)}, v{vt4} offset:{SH_STATS}")
        s.append(f"ds_read_b64 {vp(vt2)}, v{vt4} offset:{SH_STATS+512}")
        return s

    def stats_full(self):
        e = self.e
        e(f"v_lshlrev_b32 v{vt4}, 3, v{vLane}")
        e(f"v_add_u32 v{vt4}, {SH_STATS}, v{vt4}")
        e(f"ds_read_b64 {vp(vt0)}, v{vt4}")
        e(f"ds_read_b64 {vp(vt2)}, v{vt4} offset:512")
        e("s_waitcnt lgkmcnt(0)")
        e(f"v_add_f32 v{vt0}, v{vt0}, v{vt2}"); e(f"v_add_f32 v{vt1}, v{vt1}, v{vt3}")
        e(f"ds_read_b64 {vp(vt2)}, v{vt4} offset:1024")
        e("s_waitcnt lgkmcnt(0)")
        e(f"v_add_f32 v{vt0}, v{vt0}, v{vt2}"); e(f"v_add_f32 v{vt1}, v{vt1}, v{vt3}")
        e(f"ds_read_b64 {vp(vt2)}, v{vt4} offset:1536")
        e("s_waitcnt lgkmcnt(0)")
        e(f"v_add_f32 v{vt0}, v{vt0}, v{vt2}"); e(f"v_add_f32 v{vt1}, v{vt1}, v{vt3}")
        self.stats_finish()

    def stats_finish(self):
        e = self.e
        for sh in (4, 8):
            e(f"v_add_f32_dpp v{vt0}, v{vt0}, v{vt0} row_ror:{sh} {DPP}")
            e(f"v_add_f32_dpp v{vt1}, v{vt1}, v{vt1} row_ror:{sh} {DPP}")
        e(f"v_permlane32_swap_b32 v{vt0}, v{vt1}")
        e(f"v_add_f32 v{vt0}, v{vt0}, v{vt1}")
        e(f"v_mov_b32 v{vt1}, v{vt0}")
        e(f"v_permlane16_swap_b32 v{vt0}, v{vt1}")
        e(f"v_add_f32 v{vt0}, v{vt0}, v{vt1}")
        e(f"v_mov_b32 v{vt1}, v{vt0}")
        e(f"v_permlane32_swap_b32 v{vt0}, v{vt1}")
        e(f"v_mul_f32 v{vt0}, {f32(1.0/576)}, v{vt0}")
        e(f"v_mul_f32 v{vt1}, {f32(1.0/576)}, v{vt1}")
        e(f"v_fma_f32 v{vt1}, -v{vt0}, v{vt0}, v{vt1}")
        e(f"v_max_f32 v{vt1}, 0, v{vt1}")
        e(f"v_add_f32 v{vt1}, {f32(1e-5)}, v{vt1}")
        e(f"v_rsq_f32 v{vt1}, v{vt1}")

    def chain2(self, aq, ks0_sgpr_off, ring, acc, nks):
        e = self.e
        nb = (nks + 1) // 2
        R = len(ring)
        for m in range(min(R, nb)):
            e(f"ds_read_b128 {vq(ring[m])}, v{vt5} offset:{m*512}")
        issued = min(R, nb)
        for m in range(nb):
            e(f"s_waitcnt lgkmcnt({issued - m - 1})")
            for kk in range(2):
                ks = 2 * m + kk
                if ks >= nks: continue
                c = "0" if m == 0 else vq(acc + 4 * kk)
                e(f"v_mfma_f32_16x16x32_bf16 {vq(acc + 4*kk)}, {aq[ks]}, {vq(ring[m % R])}, {c}")
            if issued < nb:
                e(f"ds_read_b128 {vq(ring[m % R])}, v{vt5} offset:{issued*512}")
                issued += 1
        for r in range(4):
            e(f"v_add_f32_dpp v{acc+r}, v{acc+4+r}, v{acc+r} row_shl:4 {DPP}")

    def rs_addr_xold(self, from_input, soff_x):
        e = self.e
        e(f"v_mov_b32 v{vt3}, 0")
        e(f"v_lshrrev_b32 v{vt0}, 4, v{vLane}")
        e(f"v_bfe_u32 v{vt1}, v{vLane}, 2, 2")
        e(f"v_and_b32 v{vt2}, 3, v{vLane}")
        if from_input:
            e(f"v_mul_u32_u24 v{vt2}, 1152, v{vt2}")
            e(f"v_lshl_add_u32 v{vt2}, v{vt1}, 3, v{vt2}")
            e(f"v_lshl_add_u32 v{vt2}, v{vt0}, 1, v{vt2}")
            e(f"s_lshl_b32 s{sT0}, s{sCt}, 5")
            e(f"buffer_load_short_d16_hi v{vt3}, v{vt2}, {srd(SX)}, s{sT0} offen")
        else:
            e(f"v_lshlrev_b32 v{vt2}, 4, v{vt2}")
            e(f"v_lshl_add_u32 v{vt2}, v{vt0}, 1, v{vt2}")
            e(f"v_and_b32 v{vt0}, 1, v{vt1}"); e(f"v_lshl_add_u32 v{vt2}, v{vt0}, 3, v{vt2}")
            e(f"v_lshrrev_b32 v{vt0}, 1, v{vt1}"); e(f"v_lshl_add_u32 v{vt2}, v{vt0}, 6, v{vt2}")
            e(f"s_lshl_b32 s{sT0}, s{sCt}, 7"); e(f"s_add_u32 s{sT0}, s{sT0}, s{soff_x}")
            e(f"buffer_load_short_d16_hi v{vt3}, v{vt2}, {srd(SWS)}, s{sT0} offen sc1")

    def rs_stage(self, s_y, s_xdst, final_label_out, between=None):
        e = self.e
        A = 108
        e(f"s_lshl_b32 s{sT0}, s{sCt}, 12"); e(f"s_add_u32 s{sT0}, s{sT0}, s{s_y}")
        self.poll([f"buffer_load_dwordx4 {vq(A+4*i)}, v{vL16}, {srd(SWS)}, s{sT0} offen offset:{1024*i} sc1" for i in range(4)],
                  [A + 4 * i for i in range(4)], between=between)
        for r in range(4):
            e(f"v_add_f32 v{A+r}, v{A+r}, v{A+4+r}")
            e(f"v_add_f32 v{A+8+r}, v{A+8+r}, v{A+12+r}")
        for r in range(4):
            e(f"v_add_f32 v{A+r}, v{A+r}, v{A+8+r}")
        e(f"v_permlane32_swap_b32 v{A}, v{A+2}")
        e(f"v_permlane32_swap_b32 v{A+1}, v{A+3}")
        e(f"v_add_f32 v{A}, v{A}, v{A+2}")
        e(f"v_add_f32 v{A+1}, v{A+1}, v{A+3}")
        e(f"v_permlane16_swap_b32 v{A}, v{A+1}")
        e(f"v_add_f32 v{A}, v{A}, v{A+1}")
        e(f"v_cvt_pk_bf16_f32 v{A}, v{A}, v{A}")
        e(f"v_and_b32 v{A}, 0xffff0000, v{A}")
        e(f"v_add_f32 v{A}, v{A}, v{vt3}")
        e(f"v_mov_b32 v{A+1}, v{A}")
        e(f"v_permlane16_swap_b32 v{A}, v{A+1}")
        e(f"v_cvt_pk_bf16_f32 v{A}, v{A}, v{A+1}")
        e(f"v_lshrrev_b32 v{vt0}, 5, v{vLane}")
        e(f"v_bfe_u32 v{vt1}, v{vLane}, 2, 2")
        e(f"v_and_b32 v{vt2}, 3, v{vLane}")
        if s_xdst is None:
            e(f"v_mul_u32_u24 v{vt2}, 1152, v{vt2}")
            e(f"v_lshl_add_u32 v{vt2}, v{vt1}, 3, v{vt2}")
            e(f"v_lshl_add_u32 v{vt2}, v{vt0}, 2, v{vt2}")
            e(f"s_lshl_b32 s{sT0}, s{sCt}, 5")
            e("s_mov_b32 exec_lo, 0xffff"); e("s_mov_b32 exec_hi, 0xffff")
            e(f"buffer_store_dword v{A}, v{vt2}, {srd(SOUT)}, s{sT0} offen")
        else:
            e(f"v_lshlrev_b32 v{vt2}, 4, v{vt2}")
            e(f"v_lshl_add_u32 v{vt2}, v{vt0}, 2, v{vt2}")
            e(f"v_and_b32 v{vt0}, 1, v{vt1}"); e(f"v_lshl_add_u32 v{vt2}, v{vt0}, 3, v{vt2}")
            e(f"v_lshrrev_b32 v{vt0}, 1, v{vt1}"); e(f"v_lshl_add_u32 v{vt2}, v{vt0}, 6, v{vt2}")
            e(f"s_lshl_b32 s{sT0}, s{sCt}, 7"); e(f"s_add_u32 s{sT0}, s{sT0}, s{s_xdst}")
            e("s_mov_b32 exec_lo, 0xffff"); e("s_mov_b32 exec_hi, 0xffff")
            self.pub_local(f"buffer_store_dword v{A}, v{vt2}, {srd(SWS)}, s{sT0} offen")
        e("s_mov_b64 exec, -1")

    def wq_core(self, s_q):
        e = self.e
        D, CSP, B = 96, 92, 108
        e(f"s_mul_i32 s{sT1}, s{sW}, 9"); e(f"s_add_u32 s{sT1}, s{sT1}, 1"); e(f"s_lshr_b32 s{sT1}, s{sT1}, 1")
        e(f"s_lshl_b32 s{sT1}, s{sT1}, 8")
        e(f"v_add_u32 v{vt5}, s{sT1}, v{vFrag}")
        for i in range(5):
            e(f"ds_read_b128 {vq(B+4*i)}, v{vt5} offset:{256*i}")
        for i in range(4):
            e(f"s_waitcnt lgkmcnt({4-i})")
            e(f"v_mfma_f32_16x16x32_bf16 {vq(D)}, {vq(T0+4*i)}, {vq(B+4*i)}, {'0' if i == 0 else vq(D)}")
        l4 = self.a.uid("Lwq4")
        e("s_waitcnt lgkmcnt(0)")
        e(f"s_bitcmp1_b32 s{sW}, 0"); e(f"s_cbranch_scc1 {l4}")
        e(f"v_mfma_f32_16x16x32_bf16 {vq(D)}, {vq(T0+16)}, {vq(B+16)}, {vq(D)}")
        self.a.label(l4)
        e(f"ds_write_b128 v{vStage}, {vq(CSP)} offset:1024")
        e(f"ds_write_b128 v{vStage}, {vq(D)}")
        lskip = self.a.uid("Lwqs")
        lnw0 = self.a.uid("Lwqn")
        e(f"s_cmp_eq_u32 s{sW}, 0"); e(f"s_cbranch_scc0 {lnw0}")
        self.stats_full()
        self.a.label(lnw0)
        e("s_waitcnt lgkmcnt(0)")
        e("s_barrier")
        e(f"s_cmp_eq_u32 s{sW}, 0"); e(f"s_cbranch_scc0 {lskip}")
        for w in range(1, 4):
            e(f"ds_read_b128 {vq(B+4*(w-1))}, v{vStage} offset:{2048*w}")
        for w in range(1, 4):
            e(f"ds_read_b128 {vq(T0+4*(w-1))}, v{vStage} offset:{2048*w+1024}")
        e(f"v_lshrrev_b32 v{vt2}, 5, v{vLane}")
        e(f"s_and_b32 s{sT0}, s{sj}, 7"); e(f"s_lshl_b32 s{sT0}, s{sT0}, 1")
        e(f"v_add_u32 v{vt2}, s{sT0}, v{vt2}")
        e(f"v_and_b32 v{vt3}, 3, v{vt2}"); e(f"v_lshlrev_b32 v{vt3}, 7, v{vt3}")
        e(f"v_lshrrev_b32 v{vt2}, 2, v{vt2}"); e(f"v_lshl_add_u32 v{vt3}, v{vt2}, 5, v{vt3}")
        e(f"v_bfe_u32 v{vt2}, v{vLane}, 4, 1"); e(f"v_lshl_add_u32 v{vt3}, v{vt2}, 3, v{vt3}")
        e(f"v_and_b32 v{vt2}, 3, v{vLane}"); e(f"v_lshl_add_u32 v{vt3}, v{vt2}, 10, v{vt3}")
        e(f"s_lshr_b32 s{sT0}, s{sj}, 4"); e(f"s_lshl_b32 s{sT0}, s{sT0}, 9")
        e(f"s_bfe_u32 s{sT1}, s{sj}, 0x10003"); e(f"s_lshl_b32 s{sT1}, s{sT1}, 4")
        e(f"s_add_u32 s{sT0}, s{sT0}, s{sT1}"); e(f"s_add_u32 s{sT0}, s{sT0}, s{s_q}")
        e("s_waitcnt lgkmcnt(3)")
        for w in range(3):
            for r in range(4): e(f"v_add_f32 v{D+r}, v{D+r}, v{B+4*w+r}")
        e("s_waitcnt lgkmcnt(0)")
        for w in range(3):
            for r in range(4): e(f"v_add_f32 v{CSP+r}, v{CSP+r}, v{T0+4*w+r}")
        for r in range(4):
            e(f"v_fma_f32 v{D+r}, -v{vt0}, v{CSP+r}, v{D+r}")
        for r in range(4):
            e(f"v_mul_f32 v{D+r}, v{vt1}, v{D+r}")
        e(f"v_cvt_pk_bf16_f32 v{D}, v{D}, v{D+1}")
        e(f"v_cvt_pk_bf16_f32 v{D+1}, v{D+2}, v{D+3}")
        e(f"s_mov_b64 exec, s[{sM4}:{sM4+1}]")
        self.pub_local(f"buffer_store_dwordx2 {vp(D)}, v{vt3}, {srd(SWS)}, s{sT0} offen")
        e("s_mov_b64 exec, -1")
        self.a.label(lskip)

    def attention(self):
        e = self.e
        Q, D, MA, MB, KB = 72, 88, 100, 104, 108
        e(f"s_lshl_b32 s{sT0}, s{sLayer}, 12"); e(f"s_add_u32 s{sT0}, s{sT0}, s{sL}")
        e(f"s_bfe_u32 s{sT1}, s{sj}, 0x20002"); e(f"s_lshl_b32 s{sT1}, s{sT1}, 10"); e(f"s_add_u32 s{sT0}, s{sT0}, s{sT1}")
        e(f"s_lshr_b32 s{sT1}, s{sj}, 4"); e(f"s_lshl_b32 s{sT1}, s{sT1}, 9"); e(f"s_add_u32 s{sT0}, s{sT0}, s{sT1}")
        e(f"v_lshrrev_b32 v{vt0}, 4, v{vLane}"); e(f"v_lshlrev_b32 v{vt0}, 7, v{vt0}")
        e(f"v_and_b32 v{vt1}, 7, v{vLane}"); e(f"v_lshl_add_u32 v{vt0}, v{vt1}, 4, v{vt0}")
        e(f"s_lshl_b32 s{sT1}, s{sW}, 12"); e(f"s_add_u32 s{sT1}, s{sT1}, {K15_BASE}")
        e(f"v_add_u32 v{vt1}, s{sT1}, v{vL16}")
        for jj in range(4):
            e(f"ds_read_b128 {vq(KB+4*jj)}, v{vt1} offset:{1024*jj}")
        self.poll([f"buffer_load_dwordx4 {vq(Q)}, v{vt0}, {srd(SWS)}, s{sT0} offen sc1"], [Q, Q + 2])
        self.stamp("q_got")
        for jj in range(1, 4):
            for r in range(4):
                e(f"v_mov_b32_dpp v{Q+4*jj+r}, v{Q+r} row_shl:{2*jj} {DPP}")
        e("s_waitcnt lgkmcnt(0)")
        def merge(T, r):
            M = MA if T < 8 else MB
            v = T % 8
            src = D + 4 * (T % 3) + r
            if v == 0: e(f"v_mov_b32 v{M+r}, v{src}")
            else: e(f"v_mov_b32_dpp v{M+r}, v{src} row_shr:{2*v} {DPP}")
        for T in range(16):
            d = vq(D + 4 * (T % 3))
            for jj in range(4):
                aop = f"a[{16*T+4*jj}:{16*T+4*jj+3}]" if T < 15 else vq(KB + 4 * jj)
                e(f"v_mfma_f32_16x16x32_bf16 {d}, {aop}, {vq(Q+4*jj)}, {'0' if jj == 0 else d}")
                if T >= 2: merge(T - 2, jj)
        VB = 108
        AD = [vt0, vt1, vt2, vt3]
        def set_addr(G):
            for tt in range(4):
                t = 4 * G + tt
                if t == 0: e(f"v_mov_b32 v{AD[tt]}, v{vTR0}")
                else: e(f"v_xor_b32 v{AD[tt]}, {t << 5}, v{vTR0}")
        def vread(p, tt):
            for u in range(2):
                e(f"ds_read_b64_tr_b16 {vp(VB+4*tt+2*u)}, v{AD[tt]} offset:{(2*p-8+u)*4096}")
        set_addr(0)
        for r in range(4): merge(14, r)
        for tt in range(4): vread(4, tt)
        for r in range(4): merge(15, r)
        m, l, t = 124, 125, 126
        e(f"v_max3_f32 v{m}, v{MA}, v{MA+1}, v{MA+2}")
        e(f"v_max3_f32 v{t}, v{MA+3}, v{MB}, v{MB+1}")
        e(f"v_max3_f32 v{m}, v{m}, v{MB+2}, v{MB+3}")
        e(f"v_max_f32 v{m}, v{m}, v{t}")
        for sh in (2, 4, 8):
            e(f"v_max_f32_dpp v{m}, v{m}, v{m} row_ror:{sh} {DPP}")
        self.xrow_all(m, t, "v_max_f32")
        e(f"v_mul_f32 v{m}, s{sC}, v{m}")
        for i in range(8):
            e(f"v_fma_f32 v{MA+i}, v{MA+i}, s{sC}, -v{m}")
        for i in range(8):
            e(f"v_exp_f32 v{MA+i}, v{MA+i}")
        PK, BO, AC, OM = 72, 76, 84, 100
        for i in range(4):
            e(f"v_cvt_pk_bf16_f32 v{PK+i}, v{MA+2*i}, v{MA+2*i+1}")
        e(f"v_add_f32 v{l}, v{MA}, v{MA+1}"); e(f"v_add_f32 v{t}, v{MA+2}, v{MA+3}")
        e(f"v_add_f32 v{l}, v{l}, v{MB}"); e(f"v_add_f32 v{t}, v{t}, v{MB+1}")
        e(f"v_add_f32 v{l}, v{l}, v{MB+2}"); e(f"v_add_f32 v{t}, v{t}, v{MB+3}")
        e(f"v_add_f32 v{l}, v{l}, v{t}")
        def bop(p, slot):
            out = []
            for u in range(2):
                tile = 2 * p + u
                pk = PK + (0 if tile < 8 else 2)
                sh = 2 * (tile % 8)
                for i in range(2):
                    dst = BO + 4 * slot + 2 * u + i
                    if sh == 0: out.append(f"v_mov_b32 v{dst}, v{pk+i}")
                    else: out.append(f"v_mov_b32_dpp v{dst}, v{pk+i} row_shl:{sh} {DPP}")
            return out
        order = [0, 4, 1, 5, 2, 6, 3, 7]
        steps = [(G, p) for G in range(2) for p in order]
        for ins in bop(steps[0][1], 0): e(ins)
        lred = [f"v_add_f32_dpp v{l}, v{l}, v{l} row_ror:{sh} {DPP}" for sh in (2, 4, 8)]
        for si, (G, p) in enumerate(steps):
            slot = si % 2
            nxt = bop(steps[si + 1][1], 1 - slot) if si + 1 < len(steps) else []
            first = (p == order[0])
            if G == 1 and first:
                for tt in range(4):
                    for r in range(4):
                        if tt == 0: e(f"v_mov_b32 v{OM+r}, v{AC+r}")
                        else: e(f"v_mov_b32_dpp v{OM+r}, v{AC+4*tt+r} row_shr:{2*tt} {DPP}")
            for tt in range(4):
                acc = vq(AC + 4 * tt)
                if p < 4:
                    aop = vq(128 + 32 * p + 4 * (4 * G + tt))
                else:
                    aop = vq(VB + 4 * tt)
                    last_lds = (si == len(steps) - 1)
                    e(f"s_waitcnt lgkmcnt({6 - 2*tt if last_lds else 6})")
                e(f"v_mfma_f32_16x16x32_bf16 {acc}, {aop}, {vq(BO+4*slot)}, {'0' if first else acc}")
                if p >= 4 and si + 2 < len(steps):
                    G2, p2 = steps[si + 2]
                    if G2 != G:
                        t2 = 4 * G2 + tt
                        e(f"v_xor_b32 v{AD[tt]}, {t2 << 5}, v{vTR0}")
                    vread(p2, tt)
                if nxt: e(nxt[tt])
                if si == 2 and tt < 3: e(lred[tt])
            if si == 4:
                self.xrow_all(l, t, "v_add_f32")
        for tt in range(4):
            for r in range(4):
                e(f"v_mov_b32_dpp v{OM+r}, v{AC+4*tt+r} row_shr:{2*(4+tt)} {DPP}")
        self.stamp("pv_done")
        e(f"s_lshl_b32 s{sT0}, s{sW}, 10"); e(f"s_add_u32 s{sT0}, s{sT0}, {SH_BASE}")
        e(f"v_add_u32 v{vt0}, s{sT0}, v{vL16}")
        e(f"ds_write_b128 v{vt0}, {vq(OM)}")
        e(f"v_and_b32 v{vt1}, 1, v{vLane}"); e(f"v_lshlrev_b32 v{vt1}, 3, v{vt1}")
        e(f"v_add_u32 v{vt1}, {SH_BASE+4096}, v{vt1}")
        e(f"s_lshl_b32 s{sT0}, s{sW}, 4"); e(f"v_add_u32 v{vt2}, s{sT0}, v{vt1}")
        e("s_mov_b64 exec, 3")
        e(f"ds_write_b64 v{vt2}, {vp(m)}")
        e("s_mov_b64 exec, -1")
        e("s_waitcnt lgkmcnt(0)")
        e("s_barrier")
        lskip = self.a.uid("Lcmb")
        e(f"s_cmp_eq_u32 s{sW}, 0"); e(f"s_cbranch_scc0 {lskip}")
        ML, OW = 76, 84
        for w in range(4): e(f"ds_read_b64 {vp(ML+2*w)}, v{vt1} offset:{16*w}")
        for w in range(1, 4): e(f"ds_read_b128 {vq(OW+4*(w-1))}, v{vt0} offset:{1024*w}")
        e(f"v_and_b32 v{vt2}, 1, v{vLane}"); e(f"v_lshlrev_b32 v{vt2}, 12, v{vt2}")
        e(f"v_bfe_u32 v{vt3}, v{vLane}, 2, 2"); e(f"v_lshl_add_u32 v{vt2}, v{vt3}, 10, v{vt2}")
        e(f"v_bfe_u32 v{vt3}, v{vLane}, 1, 1"); e(f"v_lshl_add_u32 v{vt2}, v{vt3}, 9, v{vt2}")
        e(f"v_lshrrev_b32 v{vt3}, 5, v{vLane}"); e(f"v_lshl_add_u32 v{vt2}, v{vt3}, 8, v{vt2}")
        e(f"v_bfe_u32 v{vt3}, v{vLane}, 4, 1"); e(f"v_lshl_add_u32 v{vt2}, v{vt3}, 3, v{vt2}")
        e(f"s_and_b32 s{sT1}, s{sj}, 3"); e(f"s_lshl_b32 s{sT1}, s{sT1}, 2"); e(f"s_bfe_u32 s{sT2}, s{sj}, 0x20002"); e(f"s_add_u32 s{sT1}, s{sT1}, s{sT2}")
        e(f"s_lshl_b32 s{sT1}, s{sT1}, 4")
        e(f"s_lshr_b32 s{sT2}, s{sj}, 4")
        e(f"s_lshl_b32 s{sT0}, s{sLayer}, 14"); e(f"s_add_u32 s{sT0}, s{sT0}, s{sL}"); e(f"s_add_u32 s{sT0}, s{sT0}, {O_OFF}")
        e(f"s_lshl_b32 s{sT3}, s{sT2}, 13"); e(f"s_add_u32 s{sT0}, s{sT0}, s{sT3}"); e(f"s_add_u32 s{sT0}, s{sT0}, s{sT1}")
        e(f"s_lshl_b32 s{sT3}, s{sLayer}, 9"); e(f"s_add_u32 s{sT3}, s{sT3}, s{sL}"); e(f"s_add_u32 s{sT3}, s{sT3}, {ML_OFF}")
        e(f"s_lshl_b32 s{sT2}, s{sT2}, 8"); e(f"s_add_u32 s{sT3}, s{sT3}, s{sT2}"); e(f"s_add_u32 s{sT3}, s{sT3}, s{sT1}")
        e("s_waitcnt lgkmcnt(3)")
        M, L = 96, 97
        e(f"v_max3_f32 v{M}, v{ML}, v{ML+2}, v{ML+4}"); e(f"v_max_f32 v{M}, v{M}, v{ML+6}")
        for w in range(4): e(f"v_sub_f32 v{ML+2*w}, v{ML+2*w}, v{M}")
        for w in range(4): e(f"v_exp_f32 v{ML+2*w}, v{ML+2*w}")
        e(f"v_mul_f32 v{L}, v{ML}, v{ML+1}")
        for w in range(1, 4): e(f"v_fmac_f32 v{L}, v{ML+2*w}, v{ML+2*w+1}")
        e(f"v_rcp_f32 v{vt3}, v{L}")
        for w in range(4): e(f"v_mul_f32 v{ML+2*w}, v{ML+2*w}, v{vt3}")
        for r in range(4): e(f"v_mul_f32 v{OM+r}, v{ML}, v{OM+r}")
        e("s_waitcnt lgkmcnt(0)")
        for w in range(1, 4):
            for r in range(4): e(f"v_fmac_f32 v{OM+r}, v{ML+2*w}, v{OW+4*(w-1)+r}")
        e(f"v_cvt_pk_bf16_f32 v{OM}, v{OM}, v{OM+1}")
        e(f"v_cvt_pk_bf16_f32 v{OM+1}, v{OM+2}, v{OM+3}")
        e(f"v_mov_b32_dpp v{M+2}, v{M} quad_perm:[1,1,1,1] {DPP}")
        e(f"v_mov_b32_dpp v{M+3}, v{L} quad_perm:[1,1,1,1] {DPP}")
        self.pub_local(f"buffer_store_dwordx2 {vp(OM)}, v{vt2}, {srd(SWS)}, s{sT0} offen")
        e("s_mov_b64 exec, 1")
        e(f"v_mov_b32 v{vt3}, 0")
        self.pub_local(f"buffer_store_dwordx4 {vq(M)}, v{vt3}, {srd(SWS)}, s{sT3} offen")
        e("s_mov_b64 exec, -1")
        self.a.label(lskip)
        e("s_barrier")
        self.stamp("o_pub")

    def wo_role(self):
        e = self.e
        B, AC, MLR = 72, 104, 120
        G = 104
        e(f"s_sub_u32 s{sT4}, s{sj}, 18")
        e(f"s_cmp_ge_u32 s{sT4}, 6"); e(f"s_cselect_b32 s{sT3}, 1, 0")
        e(f"s_mul_i32 s{sCt}, s{sT4}, 3"); e(f"s_add_u32 s{sCt}, s{sCt}, s{sW}"); e(f"s_sub_u32 s{sCt}, s{sCt}, 1")
        lw0, l1, lx = self.a.uid("Lwo0"), self.a.uid("Lwo1"), self.a.uid("Lwox")
        e(f"s_cmp_eq_u32 s{sW}, 0"); e(f"s_cbranch_scc1 {lx}")
        e(f"s_cmp_eq_u32 s{sLayer}, 0"); e(f"s_cbranch_scc0 {l1}")
        self.rs_addr_xold(True, None)
        e(f"s_branch {lx}")
        self.a.label(l1)
        e(f"s_add_u32 s{sT2}, s{sL}, {X_OFF + X_SZ}")
        self.rs_addr_xold(False, sT2)
        self.a.label(lx)
        e(f"s_lshl_b32 s{sT0}, s{sLayer}, 14"); e(f"s_add_u32 s{sT0}, s{sT0}, s{sL}"); e(f"s_add_u32 s{sT0}, s{sT0}, {O_OFF}")
        e(f"s_lshl_b32 s{sT1}, s{sT3}, 13"); e(f"s_add_u32 s{sT0}, s{sT0}, s{sT1}")
        e(f"s_lshl_b32 s{sT1}, s{sW}, 11"); e(f"s_add_u32 s{sT0}, s{sT0}, s{sT1}")
        e(f"s_add_u32 s{sT1}, s{sT1}, {SH_BASE}"); e(f"v_add_u32 v{vt0}, s{sT1}, v{vL16}")
        ld = [f"buffer_load_dwordx4 {vq(G+4*i)}, v{vL16}, {srd(SWS)}, s{sT0} offen offset:{1024*i} sc1" for i in range(2)]
        chk = [G, G + 2, G + 4, G + 6]
        lo, ldn = self.a.uid("Lwoo"), self.a.uid("Lwod")
        e(f"s_cmp_eq_u32 s{sW}, 0"); e(f"s_cbranch_scc0 {lo}")
        e(f"s_lshl_b32 s{sT2}, s{sLayer}, 9"); e(f"s_add_u32 s{sT2}, s{sT2}, s{sL}"); e(f"s_add_u32 s{sT2}, s{sT2}, {ML_OFF}")
        e(f"s_lshl_b32 s{sT1}, s{sT3}, 8"); e(f"s_add_u32 s{sT2}, s{sT2}, s{sT1}")
        e(f"v_and_b32 v{vt1}, 0xff, v{vL16}")
        self.poll(ld + [f"buffer_load_dwordx4 {vq(G+8)}, v{vt1}, {srd(SWS)}, s{sT2} offen sc1"], chk + [G + 8])
        e(f"v_lshrrev_b32 v{vt2}, 4, v{vLane}"); e(f"v_lshl_add_u32 v{vt1}, v{vt2}, 11, v{vt1}")
        e(f"v_add_u32 v{vt1}, {ST_BASE}, v{vt1}")
        e(f"ds_write_b128 v{vt1}, {vq(G+8)}")
        e(f"s_branch {ldn}")
        self.a.label(lo)
        self.poll(ld, chk)
        self.a.label(ldn)
        self.stamp("o_got")
        e(f"ds_write_b128 v{vt0}, {vq(G)}")
        e(f"ds_write_b128 v{vt0}, {vq(G+4)} offset:1024")
        e(f"v_and_b32 v{vt1}, 0xff, v{vL16}"); e(f"s_lshl_b32 s{sT1}, s{sW}, 11"); e(f"s_add_u32 s{sT1}, s{sT1}, {ST_BASE}"); e(f"v_add_u32 v{vt1}, s{sT1}, v{vt1}")
        e(f"v_add_u32 v{vt0}, {SH_BASE}, v{vL16}")
        e("s_waitcnt lgkmcnt(0)")
        e("s_barrier")
        e(f"ds_read_b128 {vq(MLR)}, v{vt1}")
        for ks in range(8): e(f"ds_read_b128 {vq(B+4*ks)}, v{vt0} offset:{1024*ks}")
        e("s_waitcnt lgkmcnt(8)")
        m0, l0, m1, l1_ = MLR, MLR + 1, MLR + 2, MLR + 3
        t0, t1 = 124, 125
        e(f"v_max_f32_dpp v{t0}, v{m0}, v{m0} row_ror:4 {DPP}"); e(f"v_max_f32_dpp v{t1}, v{m1}, v{m1} row_ror:4 {DPP}")
        e(f"v_max_f32_dpp v{t0}, v{t0}, v{t0} row_ror:8 {DPP}"); e(f"v_max_f32_dpp v{t1}, v{t1}, v{t1} row_ror:8 {DPP}")
        e(f"v_sub_f32 v{m0}, v{m0}, v{t0}"); e(f"v_sub_f32 v{m1}, v{m1}, v{t1}")
        e(f"v_exp_f32 v{m0}, v{m0}"); e(f"v_exp_f32 v{m1}, v{m1}")
        def tile_chain(ti):
            for ks in range(8):
                acc = vq(AC + 8 * ti + 4 * (ks // 4))
                if ti == 0: e(f"s_waitcnt lgkmcnt({7-ks})")
                e(f"v_mfma_f32_16x16x32_bf16 {acc}, {R_QUADS[8*ti+ks]}, {vq(B+4*ks)}, {'0' if ks % 4 == 0 else acc}")
        e(f"v_mul_f32 v{m0}, v{m0}, v{l0}"); e(f"v_mul_f32 v{m1}, v{m1}, v{l1_}")
        tile_chain(0)
        e(f"v_add_f32_dpp v{t0}, v{m0}, v{m0} row_ror:4 {DPP}"); e(f"v_add_f32_dpp v{t1}, v{m1}, v{m1} row_ror:4 {DPP}")
        e(f"v_add_f32_dpp v{t0}, v{t0}, v{t0} row_ror:8 {DPP}"); e(f"v_add_f32_dpp v{t1}, v{t1}, v{t1} row_ror:8 {DPP}")
        e(f"v_rcp_f32 v{t0}, v{t0}"); e(f"v_rcp_f32 v{t1}, v{t1}")
        e(f"v_mul_f32 v{m0}, v{m0}, v{t0}"); e(f"v_mul_f32 v{m1}, v{m1}, v{t1}")
        e(f"s_mul_i32 s{sT1}, s{sT3}, 6"); e(f"s_sub_u32 s{sT1}, s{sT4}, s{sT1}"); e(f"s_mul_i32 s{sT1}, s{sT1}, 6")
        e(f"s_lshl_b32 s{sT2}, s{sW}, 1"); e(f"s_add_u32 s{sT0}, s{sW}, 2"); e(f"s_min_u32 s{sT2}, s{sT2}, s{sT0}")
        e(f"s_add_u32 s{sT1}, s{sT1}, s{sT2}"); e(f"s_lshl_b32 s{sT1}, s{sT1}, 12")
        e(f"s_lshl_b32 s{sT2}, s{sk}, 1"); e(f"s_add_u32 s{sT2}, s{sT2}, s{sT3}"); e(f"s_lshl_b32 s{sT2}, s{sT2}, 8"); e(f"s_add_u32 s{sT1}, s{sT1}, s{sT2}")
        e(f"s_mul_i32 s{sT4}, s{sLayer}, {2*Y_SZ}"); e(f"s_add_u32 s{sT4}, s{sT4}, {Y_OFF}")
        e(f"s_add_u32 s{sT1}, s{sT1}, s{sT4}")
        e(f"v_lshrrev_b32 v{vt0}, 4, v{vLane}"); e(f"v_lshlrev_b32 v{vt0}, 6, v{vt0}")
        e(f"v_and_b32 v{vt1}, 3, v{vLane}"); e(f"v_lshl_add_u32 v{vt0}, v{vt1}, 4, v{vt0}")
        def tile_fin(ti):
            a0, a1 = AC + 8 * ti, AC + 8 * ti + 4
            for r in range(4): e(f"v_mul_f32 v{a0+r}, v{m0}, v{a0+r}")
            for r in range(4): e(f"v_fmac_f32 v{a0+r}, v{m1}, v{a1+r}")
            for sh in (4, 8):
                for r in range(4): e(f"v_add_f32_dpp v{a0+r}, v{a0+r}, v{a0+r} row_ror:{sh} {DPP}")
            e(f"s_mov_b64 exec, s[{sM4}:{sM4+1}]")
            if ti == 1: e(f"s_add_u32 s{sT1}, s{sT1}, 4096")
            e(f"buffer_store_dwordx4 {vq(a0)}, v{vt0}, {srd(SWS)}, s{sT1} offen sc1")
            e("s_mov_b64 exec, -1")
        lone, lfin = self.a.uid("Lwo1t"), self.a.uid("Lwof")
        e(f"s_cmp_ge_u32 s{sW}, 2"); e(f"s_cbranch_scc1 {lone}")
        tile_chain(1)
        tile_fin(0)
        tile_fin(1)
        e(f"s_branch {lfin}")
        self.a.label(lone)
        tile_fin(0)
        self.a.label(lfin)
        self.stamp("y_pub")
        lno = self.a.uid("Lrs1n")
        e(f"s_cmp_eq_u32 s{sW}, 0"); e(f"s_cbranch_scc1 {lno}")
        e("s_waitcnt vmcnt(0)")
        e(f"s_mul_i32 s{sT3}, s{sLayer}, {2*X_SZ}"); e(f"s_add_u32 s{sT3}, s{sT3}, s{sL}"); e(f"s_add_u32 s{sT3}, s{sT3}, {X_OFF}")
        self.rs_stage(sT4, sT3, None)
        self.a.label(lno)
        self.stamp("x_pub")

    def ffn_role(self, l_end, l_wq):
        e = self.e
        W2Q = [vq(T0 + 4 * i) for i in range(9)]
        RING, AC = [108, 112, 116], 120
        self.vaddr_form1(vt0, 1152)
        e(f"s_mul_i32 s{sT1}, s{sk}, {576*1152}")
        e(f"s_and_b32 s{sT2}, s{sW}, 1"); e(f"s_mul_i32 s{sT2}, s{sT2}, {288*1152}"); e(f"s_add_u32 s{sT1}, s{sT1}, s{sT2}")
        e(f"s_lshl_b32 s{sT2}, s{sj}, 6"); e(f"s_add_u32 s{sT1}, s{sT1}, s{sT2}")
        e(f"s_lshr_b32 s{sT2}, s{sW}, 1"); e(f"s_lshl_b32 s{sT2}, s{sT2}, 5"); e(f"s_add_u32 s{sT1}, s{sT1}, s{sT2}")
        self.wload_form1(W2Q, SW2, 1152, sT1, vt0)
        e("s_waitcnt vmcnt(0)")
        self.transpose_form1(W2Q)
        e("s_waitcnt lgkmcnt(0)")
        self.stamp("w2_ready")
        e(f"s_mul_i32 s{sT4}, s{sLayer}, {2*X_SZ}"); e(f"s_add_u32 s{sT4}, s{sT4}, s{sL}"); e(f"s_add_u32 s{sT4}, s{sT4}, {X_OFF}")
        self.gshare(sT4, True, sleep=1)
        self.stamp("x_got")
        self.stats_full()
        e(f"v_bfe_u32 v{vt5}, v{vLane}, 2, 1"); e(f"v_lshl_add_u32 v{vt5}, v{vt5}, 8, v{vFrag}")
        self.chain2(R_QUADS, None, RING, AC, 18)
        for r in range(4): e(f"v_fma_f32 v{AC+r}, -v{vt0}, v{vCS+r}, v{AC+r}")
        for r in range(4): e(f"v_mul_f32 v{AC+r}, v{vt1}, v{AC+r}")
        e(f"v_permlane32_swap_b32 v{AC}, v{AC+2}")
        e(f"v_permlane32_swap_b32 v{AC+1}, v{AC+3}")
        for r in range(2): e(f"v_mul_f32 v{AC+4+r}, {f32(-LOG2E)}, v{AC+r}")
        for r in range(2): e(f"v_exp_f32 v{AC+4+r}, v{AC+4+r}")
        for r in range(2): e(f"v_add_f32 v{AC+4+r}, 1.0, v{AC+4+r}")
        for r in range(2): e(f"v_rcp_f32 v{AC+4+r}, v{AC+4+r}")
        for r in range(2): e(f"v_mul_f32 v{AC+r}, v{AC+r}, v{AC+2+r}")
        for r in range(2): e(f"v_mul_f32 v{AC+r}, v{AC+r}, v{AC+4+r}")
        e(f"v_cvt_pk_bf16_f32 v{AC}, v{AC}, v{AC+1}")
        e(f"v_and_b32 v{vt2}, 3, v{vLane}"); e(f"v_lshlrev_b32 v{vt2}, 4, v{vt2}")
        e(f"v_bfe_u32 v{vt3}, v{vLane}, 4, 1"); e(f"v_lshl_add_u32 v{vt2}, v{vt3}, 3, v{vt2}")
        e(f"v_lshrrev_b32 v{vt3}, 5, v{vLane}"); e(f"v_lshl_add_u32 v{vt2}, v{vt3}, 2, v{vt2}")
        e(f"s_mul_i32 s{sT3}, s{sLayer}, {H_SZ}"); e(f"s_add_u32 s{sT3}, s{sT3}, s{sL}"); e(f"s_add_u32 s{sT3}, s{sT3}, {H_OFF}")
        e(f"s_lshl_b32 s{sT0}, s{sj}, 8"); e(f"s_add_u32 s{sT0}, s{sT0}, s{sT3}"); e(f"s_lshl_b32 s{sT1}, s{sW}, 6"); e(f"s_add_u32 s{sT0}, s{sT0}, s{sT1}")
        e(f"s_mov_b64 exec, s[{sM4}:{sM4+1}]")
        self.pub_local(f"buffer_store_dword v{AC}, v{vt2}, {srd(SWS)}, s{sT0} offen")
        e("s_mov_b64 exec, -1")
        self.stamp("h_pub")
        e("s_barrier")
        self.gshare(sT3, False)
        self.stamp("h_got")
        e(f"s_lshl_b32 s{sCt}, s{sj}, 1"); e(f"s_and_b32 s{sT0}, s{sW}, 1"); e(f"s_add_u32 s{sCt}, s{sCt}, s{sT0}")
        e(f"s_mul_i32 s{sT0}, s{sT0}, {9*256}")
        e(f"v_bfe_u32 v{vt5}, v{vLane}, 2, 1"); e(f"v_lshl_add_u32 v{vt5}, v{vt5}, 8, v{vFrag}"); e(f"v_add_u32 v{vt5}, s{sT0}, v{vt5}")
        self.chain2(W2Q, None, RING, AC, 9)
        e(f"s_lshl_b32 s{sT1}, s{sj}, 1"); e(f"s_lshr_b32 s{sT2}, s{sW}, 1"); e(f"s_add_u32 s{sT1}, s{sT1}, s{sT2}"); e(f"s_lshl_b32 s{sT1}, s{sT1}, 12")
        e(f"s_lshl_b32 s{sT2}, s{sk}, 1"); e(f"s_and_b32 s{sT0}, s{sW}, 1"); e(f"s_add_u32 s{sT2}, s{sT2}, s{sT0}"); e(f"s_lshl_b32 s{sT2}, s{sT2}, 8")
        e(f"s_add_u32 s{sT1}, s{sT1}, s{sT2}")
        e(f"s_mul_i32 s{sT3}, s{sLayer}, {2*Y_SZ}"); e(f"s_add_u32 s{sT3}, s{sT3}, {Y_OFF + Y_SZ}")
        e(f"s_add_u32 s{sT1}, s{sT1}, s{sT3}")
        e(f"v_lshrrev_b32 v{vt0}, 4, v{vLane}"); e(f"v_lshlrev_b32 v{vt0}, 6, v{vt0}")
        e(f"v_and_b32 v{vt1}, 3, v{vLane}"); e(f"v_lshl_add_u32 v{vt0}, v{vt1}, 4, v{vt0}")
        e(f"s_mov_b64 exec, s[{sM4}:{sM4+1}]")
        e(f"buffer_store_dwordx4 {vq(AC)}, v{vt0}, {srd(SWS)}, s{sT1} offen sc1")
        e("s_mov_b64 exec, -1")
        self.stamp("y2_pub")
        llast = self.a.uid("Lffl")
        e(f"s_cmp_eq_u32 s{sLayer}, 1"); e(f"s_cbranch_scc1 {llast}")
        self.wq_prefetch_issue()
        lnr, lr2 = self.a.uid("Lffn"), self.a.uid("Lffr")
        e(f"s_cmp_ge_u32 s{sW}, 2"); e(f"s_cbranch_scc1 {lnr}")
        self.rs_addr_xold(False, sT4)
        e("s_waitcnt vmcnt(0)")
        e(f"s_add_u32 s{sT4}, s{sT4}, {X_SZ}")
        self.rs_stage(sT3, sT4, None, between=self.wq_prefetch_finish)
        e(f"s_branch {lr2}")
        self.a.label(lnr)
        e("s_waitcnt vmcnt(0)")
        self.wq_prefetch_finish()
        self.a.label(lr2)
        self.stamp("x2_pub")
        e(f"s_branch {l_wq}")
        self.a.label(llast)
        e(f"s_cmp_ge_u32 s{sW}, 2"); e(f"s_cbranch_scc1 {l_end}")
        e(f"s_and_b32 s{sT0}, s{sCt}, 7"); e(f"s_cmp_eq_u32 s{sT0}, s{sk}"); e(f"s_cbranch_scc0 {l_end}")
        self.rs_addr_xold(False, sT4)
        e("s_waitcnt vmcnt(0)")
        self.rs_stage(sT3, None, None)
        self.stamp("out")
        e(f"s_branch {l_end}")

    def build(self):
        e = self.e
        a = self.a
        e(f"; @launch grid=(256,1,1) block=(256,1,1) lds={LDS_TOTAL}")
        e('.amdgcn_target "amdgcn-amd-amdhsa--gfx950"')
        e(".text"); e(f".globl {KN}"); e(".p2align 8"); e(f".type {KN},@function")
        a.label(KN)
        e("s_cmp_ge_u32 s2, 256"); e("s_cbranch_scc1 L_end")
        e("s_load_dwordx16 s[64:79], s[0:1], 0")
        e("s_load_dwordx8 s[80:87], s[0:1], 64")
        e("v_lshrrev_b32 v1, 6, v0")
        e(f"v_and_b32 v{vLane}, 63, v0")
        e(f"v_readfirstlane_b32 s{sW}, v1")
        e(f"v_lshlrev_b32 v{vL16}, 4, v{vLane}")
        e(f"s_and_b32 s{sk}, s2, 7"); e(f"s_lshr_b32 s{sj}, s2, 3")
        e(f"s_lshl_b32 s{sL}, s{sk}, 16")
        e(f"s_mov_b32 s{sLayer}, 0"); e(f"s_mov_b32 s{sLimit}, {self.limit}")
        e(f"s_mov_b32 s{sC}, {f32(LOG2E / math.sqrt(128.0))}")
        e(f"s_mov_b32 s{sM4}, 0x000f000f"); e(f"s_mov_b32 s{sM4+1}, 0x000f000f")
        e(f"s_bfe_u32 s{sT0}, s{sj}, 0x20002"); e(f"s_lshl_b32 s{sT0}, s{sT0}, 4")
        e(f"s_lshl_b32 s{sT1}, s{sk}, 1"); e(f"s_add_u32 s{sT0}, s{sT0}, s{sT1}")
        e(f"s_lshr_b32 s{sT1}, s{sj}, 4"); e(f"s_add_u32 s{sT0}, s{sT0}, s{sT1}"); e(f"s_lshl_b32 s{sKV}, s{sT0}, 20")
        e(f"s_and_b32 s{sT1}, s{sj}, 3"); e(f"s_lshl_b32 s{sT1}, s{sT1}, 18"); e(f"s_add_u32 s{sKV}, s{sKV}, s{sT1}")
        e(f"s_lshl_b32 s{sT1}, s{sW}, 12"); e(f"s_add_u32 s{sKV}, s{sKV}, s{sT1}")
        e(f"s_mov_b32 s{sRot}, s{sj}")
        vK, vV0, vV1 = 104, 105, 106
        e(f"v_and_b32 v{vt0}, 15, v{vLane}"); e(f"v_lshrrev_b32 v{vt1}, 4, v{vLane}")
        e(f"v_lshlrev_b32 v{vK}, 8, v{vt0}"); e(f"v_lshl_add_u32 v{vK}, v{vt1}, 4, v{vK}")
        e(f"v_lshlrev_b32 v{vt2}, 1, v{vt1}"); e(f"v_xor_b32 v{vt2}, v{vt2}, v{vt0}")
        e(f"v_lshlrev_b32 v{vV0}, 4, v{vt2}"); e(f"v_lshl_add_u32 v{vV0}, v{vt1}, 8, v{vV0}")
        e(f"v_xor_b32 v{vV1}, 0x80, v{vV0}")
        e("s_waitcnt lgkmcnt(0)")
        def mk(r, p, n):
            e(f"s_mov_b32 s{r}, s{p}"); e(f"s_and_b32 s{r+1}, s{p+1}, 0xffff"); e(f"s_mov_b32 s{r+2}, {n}"); e(f"s_mov_b32 s{r+3}, 0x20000")
        mk(SK, 66, 0x4000000); mk(SV, 68, 0x4000000); mk(SWS, 86, 0x800000)
        cnt = [0]
        def vm(s):
            e(s); cnt[0] += 1
            return cnt[0]
        def wait_for(idx):
            n = cnt[0] - idx
            e(f"s_waitcnt vmcnt({min(n, 63)})")
        def tile_addr(T):
            e(f"s_add_u32 s{sT0}, s{sRot}, {T}"); e(f"s_and_b32 s{sT0}, s{sT0}, 15"); e(f"s_lshl_b32 s{sT0}, s{sT0}, 14"); e(f"s_add_u32 s{sT0}, s{sT0}, s{sKV}")
        vdone = {}
        def issue_tile(T):
            tile_addr(T)
            if T < 15:
                for jj in range(4):
                    vm(f"buffer_load_dwordx4 a[{16*T+4*jj}:{16*T+4*jj+3}], v{vK}, {srd(SK)}, s{sT0} offen offset:{64*jj}{self.nt}")
            else:
                for jj in range(4):
                    e(f"s_lshl_b32 s{sT1}, s{sW}, 12"); e(f"s_add_u32 m0, s{sT1}, {K15_BASE + jj*1024 - 64*jj}")
                    vm(f"buffer_load_dwordx4 v{vK}, {srd(SK)}, s{sT0} offen offset:{64*jj}{self.nt} lds")
            e(f"s_lshl_b32 s{sT1}, s{sW}, 15"); e(f"s_add_u32 m0, s{sT1}, {(T % 8) * 4096}")
            for i in range(4):
                vdone[T] = vm(f"buffer_load_dwordx4 v{vV0 if i % 2 == 0 else vV1}, {srd(SV)}, s{sT0} offen offset:{1024*i}{self.nt} lds")
        issue_tile(0)
        for i in range(4): e(f"v_mov_b32 v{100+i}, -1")
        e(f"s_mul_i32 s{sT0}, s2, {CLR_PER_WG}"); e(f"s_lshl_b32 s{sT1}, s{sW}, 10"); e(f"s_add_u32 s{sT1}, s{sT1}, s{sT0}")
        vm(f"buffer_store_dwordx4 v[100:103], v{vL16}, {srd(SWS)}, s{sT1} offen sc1")
        e(f"s_lshl_b32 s{sT1}, s{sW}, 6"); e(f"s_add_u32 s{sT1}, s{sT1}, s{sT0}"); e(f"s_add_u32 s{sT1}, s{sT1}, 4096")
        e("s_mov_b64 exec, 15")
        iclr = vm(f"buffer_store_dwordx4 v[100:103], v{vL16}, {srd(SWS)}, s{sT1} offen sc1")
        e("s_mov_b64 exec, -1")
        mk(SWQ, 70, 4718592); mk(SWO, 72, 4718592); mk(SW1, 76, 5308416); mk(SW3, 78, 5308416); mk(SW2, 80, 5308416)
        mk(SX, 64, 4608); mk(SOUT, 82, 4608); mk(SDBG, 84, 256)
        if self.stamps:
            e(f"s_lshl_b32 s95, s2, 10"); e(f"s_lshl_b32 s94, s{sW}, 8"); e("s_add_u32 s95, s95, s94"); e(f"s_add_u32 s95, s95, {STAMP_OFF}")
            n0 = cnt[0]
            self.stamp("start"); cnt[0] += 1
        e(f"v_lshrrev_b32 v{vt0}, 2, v{vLane}")
        e(f"v_and_b32 v{vt1}, 7, v{vt0}"); e(f"v_lshlrev_b32 v{vTR0}, 8, v{vt0}"); e(f"v_lshl_add_u32 v{vTR0}, v{vt1}, 5, v{vTR0}")
        e(f"v_and_b32 v{vt1}, 3, v{vLane}"); e(f"v_lshl_add_u32 v{vTR0}, v{vt1}, 3, v{vTR0}")
        e(f"s_lshl_b32 s{sT1}, s{sW}, 15"); e(f"v_add_u32 v{vTR0}, s{sT1}, v{vTR0}")
        e(f"v_lshrrev_b32 v{vt0}, 4, v{vLane}"); e(f"v_lshlrev_b32 v{vFrag}, 6, v{vt0}"); e(f"v_lshl_add_u32 v{vFrag}, v{vt1}, 4, v{vFrag}")
        e(f"v_add_u32 v{vFrag}, {SH_BASE}, v{vFrag}")
        e(f"s_lshl_b32 s{sT1}, s{sW}, 11"); e(f"s_add_u32 s{sT1}, s{sT1}, {ST_BASE}"); e(f"v_add_u32 v{vStage}, s{sT1}, v{vL16}")
        e(f"v_bfe_u32 v{vt2}, v{vLane}, 2, 2"); e(f"v_lshl_add_u32 v{vt2}, v{vt0}, 3, v{vt2}")
        e(f"v_lshlrev_b32 v{vTRW}, 5, v{vt2}"); e(f"v_lshl_add_u32 v{vTRW}, v{vt1}, 3, v{vTRW}"); e(f"v_add_u32 v{vTRW}, s{sT1}, v{vTRW}")
        self.wq_prefetch_issue(); cnt[0] += 5
        self.gshare(None, True, from_input=True); cnt[0] += 2
        lwo, lrn = a.uid("Lrwo"), a.uid("Lrn")
        e(f"s_cmp_lt_u32 s{sj}, 18"); e(f"s_cbranch_scc0 {lwo}")
        e(f"s_mov_b32 s{sT0}, 9216"); e(f"v_mul_lo_u32 v{vt0}, v{vLane}, s{sT0}")
        e(f"s_mul_i32 s{sT1}, s{sk}, 1152"); e(f"s_lshl_b32 s{sT2}, s{sj}, 6"); e(f"s_add_u32 s{sT1}, s{sT1}, s{sT2}")
        e(f"s_lshl_b32 s{sT2}, s{sW}, 4"); e(f"s_add_u32 s{sT1}, s{sT1}, s{sT2}")
        for rho in range(9):
            if rho: e(f"s_add_u32 s{sT1}, s{sT1}, {64*9216}")
            e(f"buffer_load_dwordx4 {R_QUADS[2*rho]}, v{vt0}, {srd(SW1)}, s{sT1} offen")
            e(f"buffer_load_dwordx4 {R_QUADS[2*rho+1]}, v{vt0}, {srd(SW3)}, s{sT1} offen")
        e(f"s_branch {lrn}")
        a.label(lwo)
        self.vaddr_form1(vt0, 1152)
        e(f"s_sub_u32 s{sT4}, s{sj}, 18"); e(f"s_cmp_ge_u32 s{sT4}, 6"); e(f"s_cselect_b32 s{sT3}, 1, 0")
        e(f"s_mul_i32 s{sT1}, s{sT3}, 6"); e(f"s_sub_u32 s{sT1}, s{sT4}, s{sT1}"); e(f"s_mul_i32 s{sT1}, s{sT1}, 6")
        e(f"s_lshl_b32 s{sT2}, s{sW}, 1"); e(f"s_add_u32 s{sT0}, s{sW}, 2"); e(f"s_min_u32 s{sT2}, s{sT2}, s{sT0}")
        e(f"s_add_u32 s{sT1}, s{sT1}, s{sT2}"); e(f"s_lshl_b32 s{sT1}, s{sT1}, 5")
        e(f"s_lshl_b32 s{sT2}, s{sk}, 1"); e(f"s_add_u32 s{sT2}, s{sT2}, s{sT3}"); e(f"s_mul_i32 s{sT2}, s{sT2}, {256*1152}")
        e(f"s_add_u32 s{sT1}, s{sT1}, s{sT2}")
        self.wload_form1(R_QUADS[0:8], SWO, 1152, sT1, vt0)
        e(f"s_add_u32 s{sT1}, s{sT1}, 32")
        self.wload_form1(R_QUADS[8:16], SWO, 1152, sT1, vt0)
        self.wload_form1(R_QUADS[16:18], SWO, 1152, sT1, vt0)
        a.label(lrn)
        cnt[0] += 18
        iw = cnt[0]
        def vpair_to_regs(p):
            wait_for(vdone[2 * p + 1])
            for t in range(8):
                if t == 0: ad = vTR0
                else:
                    e(f"v_xor_b32 v{vt0}, {t << 5}, v{vTR0}"); ad = vt0
                for u in range(2):
                    e(f"ds_read_b64_tr_b16 {vp(128 + 32*p + 4*t + 2*u)}, v{ad} offset:{(2*p+u)*4096}")
            e("s_waitcnt lgkmcnt(0)")
        for T in range(1, 4): issue_tile(T)
        wait_for(iw)
        e("s_barrier")
        lna = a.uid("Lna")
        e(f"s_cmp_eq_u32 s{sW}, 0"); e(f"s_cbranch_scc0 {lna}")
        e(f"s_getreg_b32 s{sT0}, hwreg(HW_REG_XCC_ID, 0, 4)")
        e(f"s_lshl_b32 s{sT0}, 1, s{sT0}")
        e("s_mov_b64 exec, 1")
        e(f"v_mov_b32 v{vt0}, s{sT0}"); e(f"s_lshl_b32 s{sT1}, s{sk}, 2"); e(f"s_add_u32 s{sT1}, s{sT1}, 32"); e(f"v_mov_b32 v{vt1}, s{sT1}")
        e(f"buffer_atomic_or v{vt0}, v{vt1}, {srd(SDBG)}, 0 offen sc1")
        e("s_waitcnt vmcnt(0)")
        e(f"v_mov_b32 v{vt0}, 1"); e(f"v_mov_b32 v{vt1}, 0")
        e(f"buffer_atomic_add v{vt0}, v{vt1}, {srd(SDBG)}, 0 offen sc1")
        e("s_mov_b64 exec, -1")
        a.label(lna)
        for T in range(4, 6): issue_tile(T)
        self.wq_prefetch_finish()
        lwo2, lrn2 = a.uid("Lrwo"), a.uid("Lrn")
        e(f"s_cmp_lt_u32 s{sj}, 18"); e(f"s_cbranch_scc0 {lwo2}")
        e(f"v_lshrrev_b32 v{vt0}, 4, v{vLane}"); e(f"v_bfe_u32 v{vt1}, v{vLane}, 2, 2"); e(f"v_lshl_add_u32 v{vt1}, v{vt0}, 3, v{vt1}")
        e(f"v_lshlrev_b32 v{vt1}, 4, v{vt1}"); e(f"v_bfe_u32 v{vt0}, v{vLane}, 1, 1"); e(f"v_lshl_add_u32 v{vt1}, v{vt0}, 10, v{vt1}")
        e(f"v_and_b32 v{vt0}, 1, v{vLane}"); e(f"v_lshl_add_u32 v{vt1}, v{vt0}, 3, v{vt1}")
        e(f"s_lshl_b32 s{sT1}, s{sW}, 11"); e(f"s_add_u32 s{sT1}, s{sT1}, {ST_BASE}"); e(f"v_add_u32 v{vt1}, s{sT1}, v{vt1}")
        for rho in range(9):
            e(f"ds_write_b128 v{vStage}, {R_QUADS[2*rho]}")
            e(f"ds_write_b128 v{vStage}, {R_QUADS[2*rho+1]} offset:1024")
            for kap in range(2):
                for h in range(2):
                    e(f"ds_read_b64_tr_b16 {half(R_QUADS[2*rho+kap], h)}, v{vt1} offset:{kap*512 + h*64}")
        e("s_waitcnt lgkmcnt(0)")
        self.colsum(R_QUADS, vCS, 100)
        e(f"s_branch {lrn2}")
        a.label(lwo2)
        self.transpose_form1(R_QUADS[0:16])
        e("s_waitcnt lgkmcnt(0)")
        a.label(lrn2)
        vpair_to_regs(0)
        for T in range(6, 8): issue_tile(T)
        self.gshare_write(True)
        vpair_to_regs(1)
        for T in range(8, 10): issue_tile(T)
        e(f"v_lshlrev_b32 v{vt0}, 2, v{vLane}")
        lp, ld = a.uid("Lbp"), a.uid("Lbd")
        e(f"s_mov_b32 s{sCnt}, 0")
        e("s_mov_b64 exec, 0xffff")
        ib = vm(f"buffer_load_dword v{vt1}, v{vt0}, {srd(SDBG)}, 0 offen sc1")
        e("s_mov_b64 exec, -1")
        vpair_to_regs(2)
        e(f"v_lshlrev_b32 v{vt0}, 2, v{vLane}")
        for T in range(10, 12): issue_tile(T)
        wait_for(ib)
        a.label(lp)
        e(f"v_readlane_b32 s{sT0}, v{vt1}, 0")
        e(f"s_cmp_eq_u32 s{sT0}, 256"); e(f"s_cbranch_scc1 {ld}")
        e("s_sleep 8")
        e("s_mov_b64 exec, 0xffff")
        e(f"buffer_load_dword v{vt1}, v{vt0}, {srd(SDBG)}, 0 offen sc1")
        e("s_mov_b64 exec, -1")
        e("s_waitcnt vmcnt(0)")
        e(f"s_add_u32 s{sCnt}, s{sCnt}, 1"); e(f"s_cmp_lt_u32 s{sCnt}, s{sLimit}"); e(f"s_cbranch_scc1 {lp}")
        e(f"s_mov_b32 s{sLimit}, 0")
        a.label(ld)
        e(f"s_add_u32 s{sT1}, s{sk}, 8")
        e(f"v_readlane_b32 s{sT0}, v{vt1}, s{sT1}")
        e(f"s_bcnt1_i32_b32 s{sLocal}, s{sT0}")
        if self.force_global: e(f"s_mov_b32 s{sLocal}, 2")
        e(f"s_lshl_b32 s{sT0}, s{sj}, 11"); e(f"s_add_u32 s{sT0}, s{sT0}, s{sL}"); e(f"s_lshl_b32 s{sT1}, s{sW}, 9"); e(f"s_add_u32 s{sT0}, s{sT0}, s{sT1}")
        e("s_mov_b32 exec_hi, 0")
        vm(f"buffer_load_dwordx4 v[100:103], v{vL16}, {srd(SWS)}, s{sT0} offen sc1")
        e("s_mov_b64 exec, -1")
        e(f"s_mov_b32 s{sT4}, s{sL}")
        self.wq_core(sT4)
        vpair_to_regs(3)
        for T in range(12, 16): issue_tile(T)
        self.stamp("issued")
        e("s_waitcnt vmcnt(0)")
        self.stamp("kv_done")
        a.label("L_layer")
        self.attention()
        e(f"s_cmp_lt_u32 s{sj}, 18"); e("s_cbranch_scc1 L_ffn")
        e(f"s_cmp_lt_u32 s{sj}, 30"); e("s_cbranch_scc0 L_idle")
        self.wo_role()
        a.label("L_idle")
        e(f"s_cmp_eq_u32 s{sLayer}, 1"); e("s_cbranch_scc1 L_end")
        self.wq_prefetch_issue()
        e("s_waitcnt vmcnt(0)")
        self.wq_prefetch_finish()
        e("s_branch L_wq")
        a.label("L_ffn")
        self.ffn_role("L_end", "L_wq")
        a.label("L_wq")
        e("s_barrier")
        e(f"s_add_u32 s{sT4}, s{sL}, {X_OFF + X_SZ}")
        self.gshare(sT4, True, sleep=1)
        self.stamp("x2_got")
        e(f"s_add_u32 s{sT4}, s{sL}, {Q_SZ}")
        self.wq_core(sT4)
        self.stamp("q_pub")
        e(f"s_mov_b32 s{sLayer}, 1")
        e("s_branch L_layer")
        a.label("L_end")
        e("s_endpgm")
        e('.section .rodata,"a"'); e(".p2align 6"); e(f".amdhsa_kernel {KN}")
        for d in ("next_free_vgpr 512", "next_free_sgpr 102", "accum_offset 256", "group_segment_fixed_size 0", "kernarg_size 96",
                  "user_sgpr_count 2", "user_sgpr_kernarg_segment_ptr 1", "system_sgpr_workgroup_id_x 1"):
            e(f".amdhsa_{d}")
        e(".end_amdhsa_kernel")
        return a.finish()


if __name__ == "__main__":
    import argparse
    ap = argparse.ArgumentParser()
    ap.add_argument("-o", default="k.s")
    ap.add_argument("--stamps", action="store_true")
    ap.add_argument("--global", dest="fg", action="store_true")
    ap.add_argument("--limit", type=lambda x: int(x, 0), default=0x200000)
    args = ap.parse_args()
    g = Gen(stamps=args.stamps, force_global=args.fg, limit=args.limit)
    open(args.o, "w").write(g.build())
    import json
    if args.stamps: json.dump(g.stamp_names, open(args.o + ".names", "w"))
    print("nops", g.a.nnop, "stamps", g.stamp_names)
```

```python
import sys, math, struct, json
from asmlib import Asm

KN = "interleave_layers__gqa_block_cached__glu_gated_swiglu__decode_kernel"
K15_BASE, SH_BASE, ST_BASE, LDS_TOTAL = 131072, 147456, 155648, 163840
SH_STATS = SH_BASE + 4608
SH_MU = SH_BASE + 6656
LREG = 73728
Q_SZ = 0
O_OFF, O_SZ = 4096, 16384
ML_OFF, ML_SZ = 36864, 512
X_OFF, X_SZ = 37888, 4608
H_OFF, H_SZ = 51712, 9216
Y_OFF, Y_SZ = 589824, 147456
CLR_PER_WG = 4608
STAMP_OFF = 4 << 20
Q0_OFF = 2 << 20
sW = 3
SK, SV, SWQ, SWO, SW1, SW3, SW2, SX, SOUT, SWS, SDBG = 4, 8, 12, 16, 20, 24, 28, 32, 36, 40, 44
sk, sj, sLocal, sLimit, sCnt, sL, sKV, sT0, sT1, sT2, sT3, sT4, sC, sCt, sHalf, sT5 = range(48, 64)
sQld, sQst, sOst, sMLst, sYst, sGld, sVlds, sQst0 = range(64, 72)
sW13, sQld0 = 98, 99
sM4 = 96
def srd(r): return f"s[{r}:{r+3}]"
vLane, vL16, vTR0, vFrag, vStage, vx5, vCS = 0, 1, 2, 3, 4, 5, 6
vt0, vt1, vt2, vt3, vt4, vt5 = 10, 11, 12, 13, 14, 15
R_QUADS = [f"v[{16+4*i}:{19+4*i}]" for i in range(14)] + [f"a[{240+4*i}:{243+4*i}]" for i in range(4)]
T0 = 72
def vq(b): return f"v[{b}:{b+3}]"
def vp(b): return f"v[{b}:{b+1}]"
def half(q, i):
    k, r = q[0], q[2:-1].split(":")
    lo = int(r[0]) + 2 * i
    return f"{k}[{lo}:{lo+1}]"
DPP = "row_mask:0xf bank_mask:0xf"
LOG2E = 1.4426950408889634
def f32(x): return "0x%08x" % struct.unpack("<I", struct.pack("<f", x))[0]
MFMA = "v_mfma_f32_16x16x32_bf16"


class Gen:
    def __init__(self, stamps=False, force_global=False, limit=0x200000, **opt):
        self.a = Asm()
        self.e = self.a.e
        self.stamps = stamps
        self.stamp_names = []
        self.force_global = force_global
        self.limit = limit
        self.nt = " nt"
        self.opt = dict(wowarm="", wonarrow="", xsleep=1, depth=8, skipwq=False, skipwo=False, skipclr=False, wqpol=" nt", stopat=None, codewarm=True, n1=0, n2=4, burst=8, gate=0, noarr=False, noq=False, novp=False, nowq0=False)
        self.opt.update(opt)
        self.layer = 0
        self.nt = self.opt.get("pol", " nt")

    def stamp(self, name, t0=None, t1=None):
        if not self.stamps:
            return
        name = f"L{self.layer}.{name}"
        if name not in self.stamp_names: self.stamp_names.append(name)
        i = self.stamp_names.index(name)
        ta, tb = (t0, t1) if t0 is not None else (vt4, vt5)
        e = self.e
        e("s_memrealtime s[100:101]"); e("s_memtime s[90:91]"); e("s_waitcnt lgkmcnt(0)")
        e("s_mov_b64 s[92:93], exec"); e("s_mov_b64 exec, 3")
        e(f"v_mov_b32 v{tb}, s90"); e(f"v_writelane_b32 v{tb}, s100, 0")
        e(f"v_lshlrev_b32 v{ta}, 2, v{vLane}")
        e(f"buffer_store_dword v{tb}, v{ta}, {srd(SWS)}, s95 offen offset:{8*i}")
        e("s_mov_b64 exec, s[92:93]")

    def note(self, name, sreg, ta=vt4, tb=vt5):
        if not self.stamps: return
        n = len(self.a.lines)
        self.stamp(name, ta, tb)
        self.a.lines[n:] = [l.replace("s_memtime s[90:91]", f"s_add_u32 s90, s{sreg}, 0") for l in self.a.lines[n:]]

    def lab(self, p): return self.a.uid(p)
    def L(self, l): self.a.label(l)

    def maxchain(self, regs, dst):
        e = self.e
        regs = list(regs)
        if len(regs) == 1: return regs[0]
        if len(regs) == 2:
            e(f"v_max_u32 v{dst}, v{regs[0]}, v{regs[1]}"); return dst
        e(f"v_max3_u32 v{dst}, v{regs[0]}, v{regs[1]}, v{regs[2]}")
        rr = regs[3:]
        while rr:
            if len(rr) >= 2: e(f"v_max3_u32 v{dst}, v{dst}, v{rr[0]}, v{rr[1]}"); rr = rr[2:]
            else: e(f"v_max_u32 v{dst}, v{dst}, v{rr[0]}"); rr = rr[1:]
        return dst

    def poll(self, loads, check, sleep=0, tmp=vt5):
        e = self.e
        lp, ld = self.lab("Lpoll"), self.lab("Lpdone")
        e(f"s_mov_b32 s{sCnt}, 0")
        self.L(lp)
        for l in loads: e(l)
        e("s_waitcnt vmcnt(0)")
        r = self.maxchain(check, tmp)
        e(f"v_cmp_eq_u32 vcc, -1, v{r}")
        e(f"s_cbranch_vccz {ld}")
        if sleep: e(f"s_sleep {sleep}")
        e(f"s_add_u32 s{sCnt}, s{sCnt}, 1")
        e(f"s_cmp_lt_u32 s{sCnt}, s{sLimit}")
        e(f"s_cbranch_scc1 {lp}")
        e(f"s_mov_b32 s{sLimit}, 0")
        self.L(ld)

    def pub_local(self, stores):
        e = self.e
        if isinstance(stores, str): stores = [stores]
        l1, l2 = self.lab("Lpl"), self.lab("Lpe")
        e(f"s_cmp_eq_u32 s{sLocal}, 1"); e(f"s_cbranch_scc0 {l1}")
        for s in stores: e(s)
        self.L(l2)
        self.cold.append((l1, [s if s.startswith("s_") else s + " sc1" for s in stores], l2))

    def xrow_all(self, r, t, op):
        return [f"v_mov_b32 v{t}, v{r}", f"v_permlane16_swap_b32 v{r}, v{t}", f"{op} v{r}, v{r}, v{t}",
                f"v_mov_b32 v{t}, v{r}", f"v_permlane32_swap_b32 v{r}, v{t}", f"{op} v{r}, v{r}, v{t}"]

    def if_wave(self, cond):
        l = self.lab("Lw")
        op, n = cond
        cmp_ = {"eq": "eq", "ne": "lg", "ge": "ge", "lt": "lt"}[op]
        self.e(f"s_cmp_{cmp_}_u32 s{sW}, {n}"); self.e(f"s_cbranch_scc0 {l}")
        return l

    def wload_form1(self, quads, s_rd, stride, s_base, vaddr, pol):
        e = self.e
        for i, q in enumerate(quads):
            if i == 0: e(f"s_mov_b32 s{sT0}, s{s_base}")
            else: e(f"s_add_u32 s{sT0}, s{sT0}, {32*stride}")
            e(f"buffer_load_dwordx4 {q}, v{vaddr}, {srd(s_rd)}, s{sT0} offen{pol}")

    def vaddr_form1(self, v, stride):
        e = self.e
        e(f"v_lshrrev_b32 v{v}, 1, v{vLane}"); e(f"s_mov_b32 s{sT0}, {stride}"); e(f"v_mul_lo_u32 v{v}, v{v}, s{sT0}")
        e(f"v_and_b32 v{vt5}, 1, v{vLane}"); e(f"v_lshl_add_u32 v{v}, v{vt5}, 4, v{v}")

    def transpose_form1(self, quads):
        e = self.e
        e(f"v_lshrrev_b32 v{vt4}, 4, v{vLane}"); e(f"v_bfe_u32 v{vt5}, v{vLane}, 2, 2"); e(f"v_lshl_add_u32 v{vt4}, v{vt4}, 3, v{vt5}")
        e(f"v_lshlrev_b32 v{vt4}, 5, v{vt4}"); e(f"v_and_b32 v{vt5}, 3, v{vLane}"); e(f"v_lshl_add_u32 v{vt4}, v{vt5}, 3, v{vt4}")
        e(f"s_lshl_b32 s{sT0}, s{sW}, 11"); e(f"s_add_u32 s{sT0}, s{sT0}, {ST_BASE}"); e(f"v_add_u32 v{vt4}, s{sT0}, v{vt4}")
        for i in range(0, len(quads), 2):
            grp = quads[i:i + 2]
            for u, q in enumerate(grp): e(f"ds_write_b128 v{vStage}, {q} offset:{u*1024}")
            for u, q in enumerate(grp):
                for h in range(2): e(f"ds_read_b64_tr_b16 {half(q, h)}, v{vt4} offset:{u*1024 + h*128}")
        e("s_waitcnt lgkmcnt(0)")

    def colsum(self, quads, dst, ones):
        e = self.e
        for i in range(4): e(f"v_mov_b32 v{ones+i}, 0x3f803f80")
        for i, q in enumerate(quads):
            e(f"{MFMA} {vq(dst)}, {q}, {vq(ones)}, {'0' if i == 0 else vq(dst)}")

    def wq_issue(self, pol):
        e = self.e
        self.vaddr_form1(vt0, 8192)
        e(f"s_and_b32 s{sT1}, s{sW}, 1"); e(f"s_mul_i32 s{sT1}, s{sT1}, {9*32*8192}")
        e(f"s_lshl_b32 s{sT2}, s{sk}, 10"); e(f"s_add_u32 s{sT1}, s{sT1}, s{sT2}")
        e(f"s_lshl_b32 s{sT2}, s{sj}, 5"); e(f"s_add_u32 s{sT1}, s{sT1}, s{sT2}")
        self.wload_form1([vq(T0 + 4 * i) for i in range(9)], SWQ, 8192, sT1, vt0, pol)

    def wq_finish(self):
        qs = [vq(T0 + 4 * i) for i in range(9)]
        self.transpose_form1(qs)
        self.colsum(qs, 116, 120)

    def row8gr(self, v):
        e = self.e
        e(f"v_lshrrev_b32 v{v}, 4, v{vLane}"); e(f"v_bfe_u32 v{vt5}, v{vLane}, 2, 2"); e(f"v_lshl_add_u32 v{v}, v{v}, 3, v{vt5}")

    def lines128_loads(self, quads, s_rd, stride, vA, sA, sB, pol):
        e = self.e
        e(f"v_lshrrev_b32 v{vA}, 3, v{vLane}"); e(f"s_mov_b32 s{sT0}, {stride}"); e(f"v_mul_lo_u32 v{vA}, v{vA}, s{sT0}")
        e(f"v_and_b32 v{vt5}, 7, v{vLane}"); e(f"v_lshl_add_u32 v{vA}, v{vt5}, 4, v{vA}")
        e(f"s_mul_i32 s{sT0}, s{sW}, {8*stride}"); e(f"s_add_u32 s{sB}, s{sA}, s{sT0}"); e(f"s_add_u32 s{sA}, s{sB}, s{sT0}"); e(f"s_add_u32 s{sB}, s{sB}, {256*stride}")
        loads = []
        for rho in range(4):
            pre = [f"s_add_u32 s{sA}, s{sA}, {56*stride}"] if rho else []
            loads.append(pre + [f"buffer_load_dwordx4 {quads[2*rho]}, v{vA}, {srd(s_rd)}, s{sA} offen{pol}"])
            loads.append([f"s_add_u32 s{sA}, s{sA}, {8*stride}", f"buffer_load_dwordx4 {quads[2*rho+1]}, v{vA}, {srd(s_rd)}, s{sA} offen{pol}"])
        loads.append([f"buffer_load_dwordx4 {quads[8]}, v{vA}, {srd(s_rd)}, s{sB} offen{pol}"])
        return loads

    def xaddr(self, vW, vW2, vR13, vR2):
        e = self.e
        self.row8gr(vt4)
        e(f"s_lshl_b32 s{sT0}, s{sW}, 10"); e(f"s_add_u32 s{sT0}, s{sT0}, {SH_BASE}"); e(f"v_add_u32 v{vW}, s{sT0}, v{vL16}")
        e(f"s_lshl_b32 s{sT0}, s{sW}, 11"); e(f"s_add_u32 s{sT0}, s{sT0}, {SH_BASE}"); e(f"v_add_u32 v{vW2}, s{sT0}, v{vL16}")
        if vR13 is not None:
            e(f"v_lshlrev_b32 v{vR13}, 6, v{vt4}"); e(f"v_bfe_u32 v{vt5}, v{vLane}, 1, 1"); e(f"v_lshl_add_u32 v{vR13}, v{vt5}, 12, v{vR13}")
            e(f"v_and_b32 v{vt5}, 1, v{vLane}"); e(f"v_lshl_add_u32 v{vR13}, v{vt5}, 3, v{vR13}")
            e(f"s_lshl_b32 s{sT0}, s{sW}, 4"); e(f"s_add_u32 s{sT0}, s{sT0}, {SH_BASE}"); e(f"v_add_u32 v{vR13}, s{sT0}, v{vR13}")
        e(f"v_lshlrev_b32 v{vR2}, 7, v{vt4}"); e(f"v_and_b32 v{vt5}, 3, v{vLane}"); e(f"v_lshl_add_u32 v{vR2}, v{vt5}, 3, v{vR2}")
        e(f"s_lshl_b32 s{sT0}, s{sW}, 5"); e(f"s_add_u32 s{sT0}, s{sT0}, {SH_BASE}"); e(f"v_add_u32 v{vR2}, s{sT0}, v{vR2}")

    def xround(self, ri, kind, qs, vW, vW2, vR, mid=None):
        e = self.e
        bo = (ST_BASE if ri % 2 == 0 else SH_BASE) - SH_BASE
        if kind == "13":
            e(f"ds_write_b128 v{vW}, {qs[0]} offset:{bo}"); e(f"ds_write_b128 v{vW}, {qs[1]} offset:{bo + 4096}")
        elif kind in ("2", "o"):
            e(f"ds_write_b128 v{vW2}, {qs[0]} offset:{bo}"); e(f"ds_write_b128 v{vW2}, {qs[1]} offset:{bo + 1024}")
        else:
            e(f"ds_write_b128 v{vW}, {qs[0]} offset:{bo}")
        if mid: mid()
        e("s_waitcnt lgkmcnt(0)"); e("s_barrier")
        for kap, q in enumerate(qs):
            for h in range(2):
                off = {"13": kap*2048 + h*256, "o": kap*32 + h*1024}.get(kind, kap*4096 + h*512)
                e(f"ds_read_b64_tr_b16 {half(q, h)}, v{vR} offset:{bo + off}")

    def w13_setup(self):
        e = self.e
        vA = vCS + 3
        e(f"v_lshrrev_b32 v{vA}, 3, v{vLane}"); e(f"s_mov_b32 s{sT0}, 9216"); e(f"v_mul_lo_u32 v{vA}, v{vA}, s{sT0}")
        e(f"v_and_b32 v{vt5}, 7, v{vLane}"); e(f"v_lshl_add_u32 v{vA}, v{vt5}, 4, v{vA}")
        e(f"s_mul_i32 s{sT0}, s{sHalf}, 9"); e(f"s_sub_u32 s{sT0}, s{sj}, s{sT0}"); e(f"s_lshl_b32 s{sT0}, s{sT0}, 7")
        e(f"s_mul_i32 s{sW13}, s{sk}, 1152"); e(f"s_add_u32 s{sW13}, s{sW13}, s{sT0}")
        e(f"s_mul_i32 s{sT0}, s{sW}, {16*9216}"); e(f"s_add_u32 s{sW13}, s{sW13}, s{sT0}")
        e(f"s_cmp_eq_u32 s{sHalf}, 1"); e(f"s_cselect_b32 s{SW1}, s{SW3}, s{SW1}"); e(f"s_cselect_b32 s{SW1+1}, s{SW3+1}, s{SW1+1}")
    def w13_load(self, i):
        pre = [f"s_add_u32 s{sW13}, s{sW13}, {(8 if i % 2 else 56)*9216}"] if i else []
        return pre + [f"buffer_load_dwordx4 {R_QUADS[i]}, v{vCS+3}, {srd(SW1)}, s{sW13} offen{self.nt}"]

    def ffn_weights(self, first, pre_issued=0, after_first_issue=None):
        e = self.e
        W2Q = [vq(T0 + 4 * i) for i in range(9)]
        vA2, vW, vR2, vW2 = 109, 110, 112, 113
        self.xaddr(vW, vW2, None, vR2)
        loads, rounds = [], []
        if first:
            loads = [self.w13_load(i) for i in range(18)]
            rounds = [("2", [R_QUADS[2*rho], R_QUADS[2*rho+1]]) for rho in range(9)]
        e(f"s_mul_i32 s{sT2}, s{sHalf}, 9"); e(f"s_sub_u32 s{sT2}, s{sj}, s{sT2}"); e(f"s_lshl_b32 s{sT2}, s{sT2}, 7")
        e(f"s_mul_i32 s{sT0}, s{sk}, {576*1152}"); e(f"s_add_u32 s{sT2}, s{sT2}, s{sT0}")
        e(f"s_mul_i32 s{sT0}, s{sHalf}, {288*1152}"); e(f"s_add_u32 s{sT2}, s{sT2}, s{sT0}")
        loads += self.lines128_loads(W2Q, SW2, 1152, vA2, sT2, sT3, self.nt)
        rounds += [("2", [W2Q[2*rho], W2Q[2*rho+1]]) for rho in range(4)] + [("2l", [W2Q[8]])]
        DEPTH = self.opt["depth"] if first else 9
        st = dict(issued=pre_issued)
        def issue(n):
            while st["issued"] < min(n, len(loads)):
                for i in loads[st["issued"]]: e(i)
                st["issued"] += 1
        if first and self.opt["gate"]:
            lp, ld = self.lab("Lgp"), self.lab("Lgd")
            e(f"s_add_u32 s{sT1}, s{sL}, {ML_OFF}"); e(f"s_mov_b32 s{sCnt}, 0"); e("s_mov_b32 exec_hi, 0")
            self.L(lp)
            e(f"buffer_load_dword v{vt5}, v{vL16}, {srd(SWS)}, s{sT1} offen sc1")
            e("s_waitcnt vmcnt(0)")
            e(f"v_cmp_ne_u32 vcc, -1, v{vt5}"); e(f"s_bcnt1_i32_b64 s{sT0}, vcc")
            e(f"s_cmp_ge_u32 s{sT0}, {self.opt['gate']}"); e(f"s_cbranch_scc1 {ld}")
            e("s_sleep 2")
            e(f"s_add_u32 s{sCnt}, s{sCnt}, 1"); e(f"s_cmp_lt_u32 s{sCnt}, s{sLimit}"); e(f"s_cbranch_scc1 {lp}")
            self.L(ld)
            e("s_mov_b64 exec, -1")
            self.stamp("gate")
        issue(min(pre_issued + self.opt["burst"], 18) if first else DEPTH)
        if after_first_issue: after_first_issue()
        done = 0
        for ri, (kind, qs) in enumerate(rounds):
            done += len(qs)
            e(f"s_waitcnt vmcnt({st['issued'] - done})")
            self.xround(ri, kind, qs, vW, vW2, vR2, mid=lambda: issue(done + DEPTH))
            if first and ri == 8:
                e("s_waitcnt lgkmcnt(0)")
                self.colsum(R_QUADS, vCS, 116)
                self.stamp("w13_ready")
        e("s_waitcnt lgkmcnt(0)"); e("s_barrier")

    def wo_issue(self):
        e = self.e
        e(f"v_lshrrev_b32 v{vt0}, 4, v{vLane}"); e(f"v_mul_u32_u24 v{vt0}, 1152, v{vt0}")
        e(f"v_and_b32 v{vt5}, 15, v{vLane}"); e(f"v_lshl_add_u32 v{vt0}, v{vt5}, 4, v{vt0}")
        e(f"s_mul_i32 s{sT1}, s{sHalf}, 6"); e(f"s_sub_u32 s{sT1}, s{sj}, s{sT1}"); e(f"s_sub_u32 s{sT1}, s{sT1}, 18")
        e(f"s_mul_i32 s{sT1}, s{sT1}, 192"); e(f"s_and_b32 s{sT1}, s{sT1}, 0xffffff80")
        e(f"s_lshl_b32 s{sT2}, s{sk}, 1"); e(f"s_add_u32 s{sT2}, s{sT2}, s{sHalf}"); e(f"s_mul_i32 s{sT2}, s{sT2}, {256*1152}"); e(f"s_add_u32 s{sT1}, s{sT1}, s{sT2}")
        e(f"s_mul_i32 s{sT2}, s{sW}, {8*1152}"); e(f"s_add_u32 s{sT1}, s{sT1}, s{sT2}")
        e(f"s_mov_b32 s{sT4}, s{sT1}")
    def wo_loads(self, idx):
        e = self.e
        for i in idx:
            if i: e(f"s_add_u32 s{sT4}, s{sT4}, {(4 if i % 2 else 28)*1152}")
            e(f"buffer_load_dwordx4 {R_QUADS[i]}, v{vt0}, {srd(SWO)}, s{sT4} offen{self.nt}")

    def wo_round(self, rho):
        e = self.e
        vW2, vR = vt0, vt1
        if rho == 8:
            e("s_waitcnt lgkmcnt(0)"); e("s_barrier"); return
        if rho == 0: self.wo_xaddr(vW2, vR)
        self.xround(rho, "o", [R_QUADS[2*rho], R_QUADS[2*rho+1]], None, vW2, vR)

    def wo_xaddr(self, vW2, vR):
        e = self.e
        self.row8gr(vt4)
        e(f"s_lshl_b32 s{sT0}, s{sW}, 11"); e(f"s_add_u32 s{sT0}, s{sT0}, {SH_BASE}"); e(f"v_add_u32 v{vW2}, s{sT0}, v{vL16}")
        e(f"v_lshlrev_b32 v{vR}, 8, v{vt4}"); e(f"v_and_b32 v{vt5}, 3, v{vLane}"); e(f"v_lshl_add_u32 v{vR}, v{vt5}, 3, v{vR}")
        e(f"s_lshl_b32 s{sT1}, s{sW}, 1"); e(f"s_add_u32 s{sT0}, s{sW}, 2"); e(f"s_min_u32 s{sT1}, s{sT1}, s{sT0}"); e(f"s_lshl_b32 s{sT1}, s{sT1}, 5")
        e(f"s_and_b32 s{sT0}, s{sj}, 1"); e(f"s_lshl_b32 s{sT0}, s{sT0}, 6"); e(f"s_add_u32 s{sT1}, s{sT1}, s{sT0}")
        e(f"s_add_u32 s{sT1}, s{sT1}, {SH_BASE}"); e(f"v_add_u32 v{vR}, s{sT1}, v{vR}")

    def qp_lane(self, v):
        o = [f"s_and_b32 s{sT0}, s{sj}, 1", f"s_lshl_b32 s{sT0}, s{sT0}, 3", f"s_lshl_b32 s{sT1}, s{sW}, 1", f"s_add_u32 s{sT0}, s{sT0}, s{sT1}",
             f"v_lshrrev_b32 v{vt5}, 5, v{vLane}", f"v_add_u32 v{vt5}, s{sT0}, v{vt5}",
             f"v_and_b32 v{v}, 3, v{vt5}", f"v_lshlrev_b32 v{v}, 8, v{v}", f"v_lshrrev_b32 v{vt5}, 2, v{vt5}", f"v_lshl_add_u32 v{v}, v{vt5}, 5, v{v}",
             f"v_bfe_u32 v{vt5}, v{vLane}, 4, 1", f"v_lshl_add_u32 v{v}, v{vt5}, 7, v{v}", f"v_and_b32 v{vt5}, 3, v{vLane}", f"v_lshl_add_u32 v{v}, v{vt5}, 12, v{v}"]
        return o

    def wq0_issue(self):
        e = self.e
        e(f"s_bfe_u32 s{sT5}, s{sj}, 0x10003"); e(f"s_mul_i32 s{sT5}, s{sT5}, {288*8192}")
        e(f"s_lshl_b32 s{sT0}, s{sk}, 10"); e(f"s_add_u32 s{sT5}, s{sT5}, s{sT0}")
        e(f"s_and_b32 s{sT0}, s{sj}, 7"); e(f"s_lshl_b32 s{sT0}, s{sT0}, 7"); e(f"s_add_u32 s{sT5}, s{sT5}, s{sT0}")
        return self.lines128_loads([vq(T0 + 4 * i) for i in range(9)], SWQ, 8192, vx5, sT5, sCt, self.nt)

    def wq0_round(self, rho):
        qs = [vq(T0 + 4 * i) for i in range(9)]
        if rho == 0: self.xaddr(vt0, vt1, None, vt2)
        if rho < 4: self.xround(rho, "2", qs[2*rho:2*rho+2], vt0, vt1, vt2)
        elif rho == 4: self.xround(4, "2l", qs[8:9], vt0, vt1, vt2)
        else:
            self.e("s_waitcnt lgkmcnt(0)"); self.e("s_barrier")
            self.colsum(qs, 116, 120)

    def wq0_core(self):
        e = self.e
        AC, CSP = 120, 116
        for i in self.stats_reads(12, 112): e(i)
        e(f"s_bfe_u32 s{sT0}, s{sj}, 0x10003"); e(f"s_mul_i32 s{sT0}, s{sT0}, {9*256}")
        e(f"v_bfe_u32 v{vx5}, v{vLane}, 2, 1"); e(f"v_lshl_add_u32 v{vx5}, v{vx5}, 8, v{vFrag}"); e(f"v_add_u32 v{vx5}, s{sT0}, v{vx5}")
        self.chain2([vq(T0 + 4 * i) for i in range(9)], vx5, [108], AC, 9, fill=self.stats_math(12, 112), late_ring=112)
        for i in self.qp_lane(vt3): e(i)
        for r in range(4): e(f"v_fma_f32 v{AC+r}, -v{vt0}, v{CSP+r}, v{AC+r}")
        for r in range(4): e(f"v_mul_f32 v{AC+r}, v{vt1}, v{AC+r}")
        e(f"s_mov_b64 exec, s[{sM4}:{sM4+1}]")
        e(f"buffer_store_dwordx4 {vq(AC)}, v{vt3}, {srd(SWS)}, s{sQst0} offen sc1")
        e("s_mov_b64 exec, -1")

    def convert_pair(self, p, B):
        e = self.e
        for t in range(8):
            if t == 0: ad = vTR0
            else: e(f"v_xor_b32 v{vt5}, {t << 5}, v{vTR0}"); ad = vt5
            for u in range(2):
                e(f"ds_read_b64_tr_b16 {vp(B + 4*t + 2*u)}, v{ad} offset:{(2*p-8+u)*4096}")
        e(f"v_add_u32 v{vt5}, s{sVlds}, v{vL16}")
        e("s_waitcnt lgkmcnt(0)")
        for t in range(8):
            e(f"ds_write_b128 v{vt5}, {vq(B + 4*t)} offset:{(2*p-8)*4096 + t*1024}")

    G0, G1 = 108, 112
    def gshare_poll(self, off, sleep=0):
        e = self.e
        G0, G1 = self.G0, self.G1
        e(f"s_add_u32 s{sT0}, s{sGld}, {off}")
        l1, ld = self.lab("Lg1"), self.lab("Lgd")
        e(f"s_cmp_eq_u32 s{sW}, 0"); e(f"s_cbranch_scc0 {l1}")
        e(f"v_and_b32 v{vt0}, 0x1ff, v{vL16}")
        e(f"s_add_u32 s{sT1}, s{sT0}, 4096")
        self.poll([f"buffer_load_dwordx4 {vq(G0)}, v{vL16}, {srd(SWS)}, s{sT0} offen sc1",
                   f"buffer_load_dwordx4 {vq(G1)}, v{vt0}, {srd(SWS)}, s{sT1} offen sc1"], list(range(G0, G0 + 8)), sleep=sleep)
        e(f"s_branch {ld}")
        self.L(l1)
        self.poll([f"buffer_load_dwordx4 {vq(G0)}, v{vL16}, {srd(SWS)}, s{sT0} offen sc1"], list(range(G0, G0 + 4)), sleep=sleep)
        self.L(ld)

    def gshare_pre(self):
        e = self.e
        e(f"s_lshl_b32 s{sT0}, s{sW}, 10"); e(f"s_add_u32 s{sT0}, s{sT0}, {SH_BASE}"); e(f"v_add_u32 v{vt1}, s{sT0}, v{vL16}")
        e(f"s_lshl_b32 s{sT0}, s{sW}, 3"); e(f"s_add_u32 s{sT0}, s{sT0}, {SH_STATS}"); e(f"v_lshl_add_u32 v{vx5}, v{vLane}, 5, s{sT0}")
        e(f"v_mov_b32 v{vt2}, 0"); e(f"v_mov_b32 v{vt3}, 0"); e(f"v_mov_b32 v{vt4}, 0x3f803f80")

    def gshare_write(self):
        e = self.e
        G0, G1 = self.G0, self.G1
        e(f"ds_write_b128 v{vt1}, {vq(G0)}")
        for i in range(4):
            e(f"v_dot2c_f32_bf16 v{vt2}, v{G0+i}, v{vt4}"); e(f"v_dot2c_f32_bf16 v{vt3}, v{G0+i}, v{G0+i}")
        l = self.if_wave(("eq", 0))
        e("s_mov_b32 exec_hi, 0")
        e(f"ds_write_b128 v{vt1}, {vq(G1)} offset:4096")
        for i in range(4):
            e(f"v_dot2c_f32_bf16 v{vt2}, v{G1+i}, v{vt4}"); e(f"v_dot2c_f32_bf16 v{vt3}, v{G1+i}, v{G1+i}")
        e("s_mov_b64 exec, -1")
        self.L(l)
        e(f"ds_write_b64 v{vx5}, {vp(vt2)}")
        e("s_waitcnt lgkmcnt(0)"); e("s_barrier")

    def stats_reads(self, qa, qb):
        return [f"v_lshlrev_b32 v{vt0}, 5, v{vLane}", f"v_add_u32 v{vt0}, {SH_STATS}, v{vt0}",
                f"ds_read_b128 {vq(qa)}, v{vt0}", f"ds_read_b128 {vq(qb)}, v{vt0} offset:16"]

    def stats_math(self, qa, qb):
        s = [f"v_add_f32 v{vt0}, v{qa}, v{qa+2}", f"v_add_f32 v{vt1}, v{qa+1}, v{qa+3}",
             f"v_add_f32 v{qa}, v{qb}, v{qb+2}", f"v_add_f32 v{qa+1}, v{qb+1}, v{qb+3}",
             f"v_add_f32 v{vt0}, v{vt0}, v{qa}", f"v_add_f32 v{vt1}, v{vt1}, v{qa+1}"]
        for sh in (4, 8):
            s += [f"v_add_f32_dpp v{vt0}, v{vt0}, v{vt0} row_ror:{sh} {DPP}", f"v_add_f32_dpp v{vt1}, v{vt1}, v{vt1} row_ror:{sh} {DPP}"]
        s += [f"v_permlane32_swap_b32 v{vt0}, v{vt1}", f"v_add_f32 v{vt0}, v{vt0}, v{vt1}", f"v_mov_b32 v{vt1}, v{vt0}",
              f"v_permlane16_swap_b32 v{vt0}, v{vt1}", f"v_add_f32 v{vt0}, v{vt0}, v{vt1}", f"v_mov_b32 v{vt1}, v{vt0}",
              f"v_permlane32_swap_b32 v{vt0}, v{vt1}",
              f"v_mul_f32 v{vt0}, {f32(1.0/576)}, v{vt0}", f"v_mul_f32 v{vt1}, {f32(1.0/576)}, v{vt1}",
              f"v_fma_f32 v{vt1}, -v{vt0}, v{vt0}, v{vt1}", f"v_max_f32 v{vt1}, 0, v{vt1}", f"v_add_f32 v{vt1}, {f32(1e-5)}, v{vt1}",
              f"v_rsq_f32 v{vt1}, v{vt1}"]
        return s

    def chain2(self, aq, vaddr, ring, acc, nks, fill=None, late_ring=None, pre_out=0):
        e = self.e
        nb = (nks + 1) // 2
        ring = list(ring)
        fill = list(fill or [])
        regs = {}
        free = list(ring)
        issued = 0
        def rd():
            nonlocal issued
            r = free.pop(0); regs[issued] = r
            e(f"ds_read_b128 {vq(r)}, v{vaddr} offset:{issued*512}"); issued += 1
        while free and issued < nb: rd()
        nm = 0
        per = -(-len(fill) // max(nks - 2, 1))
        for m in range(nb):
            e(f"s_waitcnt lgkmcnt({issued - m - 1})")
            for kk in range(2):
                ks = 2 * m + kk
                if ks >= nks: continue
                e(f"{MFMA} {vq(acc + 4*kk)}, {aq[ks]}, {vq(regs[m])}, {'0' if m == 0 else vq(acc + 4*kk)}")
                for _ in range(per if not (m == 0 and kk == 0) else max(per, 4)):
                    if fill: e(fill.pop(0)); nm += 1
                if late_ring is not None and nm >= 4:
                    free.append(late_ring); late_ring = None
                    if issued < nb: rd()
            free.append(regs[m])
            while free and issued < nb: rd()
        for f in fill: e(f)
        for r in range(4):
            e(f"v_add_f32_dpp v{acc+r}, v{acc+4+r}, v{acc+r} row_shl:4 {DPP}")

    def rs_pre(self, xold, dst):
        e = self.e
        e(f"v_mov_b32 v{vt3}, 0")
        e(f"v_lshrrev_b32 v{vt0}, 4, v{vLane}"); e(f"v_bfe_u32 v{vt1}, v{vLane}, 2, 2"); e(f"v_and_b32 v{vt4}, 3, v{vLane}")
        def nat(v, rho_scale):
            e(f"v_mul_u32_u24 v{v}, 1152, v{vt4}"); e(f"v_lshl_add_u32 v{v}, v{vt1}, 3, v{v}")
        def img(v):
            e(f"v_lshlrev_b32 v{v}, 4, v{vt4}"); e(f"v_and_b32 v{vt5}, 1, v{vt1}"); e(f"v_lshl_add_u32 v{v}, v{vt5}, 3, v{v}")
            e(f"v_lshrrev_b32 v{vt5}, 1, v{vt1}"); e(f"v_lshl_add_u32 v{v}, v{vt5}, 6, v{v}")
        if xold is None:
            nat(vt2, 1); e(f"v_lshl_add_u32 v{vx5}, v{vt0}, 1, v{vt2}")
            e(f"s_lshl_b32 s{sT0}, s{sCt}, 5")
            e(f"buffer_load_short_d16_hi v{vt3}, v{vx5}, {srd(SX)}, s{sT0} offen")
        else:
            img(vt2); e(f"v_lshl_add_u32 v{vx5}, v{vt0}, 1, v{vt2}")
            e(f"s_lshl_b32 s{sT0}, s{sCt}, 7"); e(f"s_add_u32 s{sT0}, s{sT0}, s{sL}"); e(f"s_add_u32 s{sT0}, s{sT0}, {xold}")
            e(f"buffer_load_short_d16_hi v{vt3}, v{vx5}, {srd(SWS)}, s{sT0} offen sc1")
        if (xold is None) != (dst is None):
            (nat(vt2, 1) if dst is None else img(vt2))
        e(f"v_lshrrev_b32 v{vt0}, 5, v{vLane}"); e(f"v_lshl_add_u32 v{vt2}, v{vt0}, 2, v{vt2}")
        if dst is None: e(f"s_lshl_b32 s{sT5}, s{sCt}, 5")
        else:
            e(f"s_lshl_b32 s{sT5}, s{sCt}, 7"); e(f"s_add_u32 s{sT5}, s{sT5}, s{sL}"); e(f"s_add_u32 s{sT5}, s{sT5}, {dst}")

    def rs_stage(self, ystage, dst):
        e = self.e
        A = 108
        e(f"s_lshl_b32 s{sT0}, s{sCt}, 12"); e(f"s_add_u32 s{sT0}, s{sT0}, {Y_OFF + ystage*Y_SZ}")
        e("s_waitcnt vmcnt(0)")
        self.poll([f"buffer_load_dwordx4 {vq(A+4*i)}, v{vL16}, {srd(SWS)}, s{sT0} offen offset:{1024*i} sc1" for i in range(4)],
                  [A + 4 * i for i in range(4)])
        for r in range(4):
            e(f"v_add_f32 v{A+r}, v{A+r}, v{A+4+r}"); e(f"v_add_f32 v{A+8+r}, v{A+8+r}, v{A+12+r}")
        for r in (0, 2, 1, 3): e(f"v_add_f32 v{A+r}, v{A+r}, v{A+8+r}")
        e(f"v_permlane32_swap_b32 v{A}, v{A+2}"); e(f"v_permlane32_swap_b32 v{A+1}, v{A+3}")
        e(f"v_add_f32 v{A}, v{A}, v{A+2}"); e(f"v_add_f32 v{A+1}, v{A+1}, v{A+3}")
        e(f"v_permlane16_swap_b32 v{A}, v{A+1}")
        e(f"v_add_f32 v{A}, v{A}, v{A+1}")
        e(f"v_cvt_pk_bf16_f32 v{A}, v{A}, v{A}")
        e(f"v_and_b32 v{A}, 0xffff0000, v{A}")
        e(f"v_add_f32 v{A}, v{A}, v{vt3}")
        e(f"v_mov_b32 v{A+1}, v{A}")
        e(f"v_permlane16_swap_b32 v{A}, v{A+1}")
        e(f"v_cvt_pk_bf16_f32 v{A}, v{A}, v{A+1}")
        e("s_mov_b32 exec_lo, 0xffff"); e("s_mov_b32 exec_hi, 0xffff")
        if dst is None: e(f"buffer_store_dword v{A}, v{vt2}, {srd(SOUT)}, s{sT5} offen")
        else: self.pub_local(f"buffer_store_dword v{A}, v{vt2}, {srd(SWS)}, s{sT5} offen")
        e("s_mov_b64 exec, -1")

    def wq_core(self, layer):
        e = self.e
        CSP, AC = 116, 120
        l01, lbar = self.lab("Lwq01"), self.lab("Lwqb")
        e(f"s_cmp_ge_u32 s{sW}, 2"); e(f"s_cbranch_scc0 {l01}")
        e(f"s_and_b32 s{sT0}, s{sW}, 1"); e(f"s_mul_i32 s{sT0}, s{sT0}, {9*256}")
        e(f"v_bfe_u32 v{vt5}, v{vLane}, 2, 1"); e(f"v_lshl_add_u32 v{vt5}, v{vt5}, 8, v{vFrag}"); e(f"v_add_u32 v{vt5}, s{sT0}, v{vt5}")
        fill = self.qst_lane() + [f"v_lshlrev_b32 v{vt4}, 3, v{vLane}", f"v_add_u32 v{vt4}, {SH_MU}, v{vt4}",
                f"s_add_u32 s{sT0}, s{sQst}, {Q_SZ}"]
        _unused = [f"v_lshrrev_b32 v{vt2}, 5, v{vLane}", f"s_and_b32 s{sT0}, s{sj}, 7", f"s_lshl_b32 s{sT0}, s{sT0}, 1", f"v_add_u32 v{vt2}, s{sT0}, v{vt2}",
                f"v_and_b32 v{vt3}, 3, v{vt2}", f"v_lshlrev_b32 v{vt3}, 7, v{vt3}", f"v_lshrrev_b32 v{vt2}, 2, v{vt2}", f"v_lshl_add_u32 v{vt3}, v{vt2}, 5, v{vt3}",
                f"v_bfe_u32 v{vt2}, v{vLane}, 4, 1", f"v_lshl_add_u32 v{vt3}, v{vt2}, 3, v{vt3}", f"v_and_b32 v{vt2}, 3, v{vLane}", f"v_lshl_add_u32 v{vt3}, v{vt2}, 10, v{vt3}",
                f"v_lshlrev_b32 v{vt4}, 3, v{vLane}", f"v_add_u32 v{vt4}, {SH_MU}, v{vt4}", f"s_add_u32 s{sT0}, s{sQst}, {layer*Q_SZ}"]
        self.chain2([vq(T0 + 4 * i) for i in range(9)], vt5, [108, 112], AC, 9, fill=fill)
        e(f"s_cmp_eq_u32 s{sW}, 3"); e(f"s_cbranch_scc0 {lbar}")
        e(f"ds_write_b128 v{vStage}, {vq(AC)}"); e(f"ds_write_b128 v{vStage}, {vq(CSP)} offset:1024")
        e("s_waitcnt lgkmcnt(0)")
        e(f"s_branch {lbar}")
        self.L(l01)
        e(f"s_cmp_eq_u32 s{sW}, 0"); e(f"s_cbranch_scc0 {lbar}")
        for i in self.stats_reads(108, 112): e(i)
        e(f"v_lshlrev_b32 v{vt4}, 3, v{vLane}"); e(f"v_add_u32 v{vt4}, {SH_MU}, v{vt4}")
        e("s_waitcnt lgkmcnt(0)")
        for i in self.stats_math(108, 112): e(i)
        e(f"ds_write_b64 v{vt4}, {vp(vt0)}")
        e("s_waitcnt lgkmcnt(0)")
        self.L(lbar)
        e("s_barrier")
        l = self.if_wave(("eq", 2))
        e(f"ds_read_b128 {vq(108)}, v{vStage} offset:2048"); e(f"ds_read_b128 {vq(112)}, v{vStage} offset:3072")
        e(f"ds_read_b64 {vp(vt0)}, v{vt4}")
        e("s_waitcnt lgkmcnt(2)")
        for r in range(4): e(f"v_add_f32 v{AC+r}, v{AC+r}, v{108+r}")
        e("s_waitcnt lgkmcnt(1)")
        for r in range(4): e(f"v_add_f32 v{CSP+r}, v{CSP+r}, v{112+r}")
        e("s_waitcnt lgkmcnt(0)")
        for r in range(4): e(f"v_fma_f32 v{AC+r}, -v{vt0}, v{CSP+r}, v{AC+r}")
        for r in range(4): e(f"v_mul_f32 v{AC+r}, v{vt1}, v{AC+r}")
        e(f"v_cvt_pk_bf16_f32 v{AC}, v{AC}, v{AC+1}"); e(f"v_cvt_pk_bf16_f32 v{AC+1}, v{AC+2}, v{AC+3}")
        e(f"s_mov_b64 exec, s[{sM4}:{sM4+1}]")
        st = f"buffer_store_dwordx2 {vp(AC)}, v{vt3}, {srd(SWS)}, s{sT0} offen"
        if layer == 0: e(st + " sc1")
        else: self.pub_local(st)
        e("s_mov_b64 exec, -1")
        self.L(l)

    def qst_lane(self):
        return [f"v_lshrrev_b32 v{vt2}, 5, v{vLane}", f"s_and_b32 s{sT0}, s{sj}, 7", f"s_lshl_b32 s{sT0}, s{sT0}, 1", f"v_add_u32 v{vt2}, s{sT0}, v{vt2}",
                f"v_and_b32 v{vt3}, 3, v{vt2}", f"v_lshlrev_b32 v{vt3}, 7, v{vt3}", f"v_lshrrev_b32 v{vt2}, 2, v{vt2}", f"v_lshl_add_u32 v{vt3}, v{vt2}, 5, v{vt3}",
                f"v_bfe_u32 v{vt2}, v{vLane}, 4, 1", f"v_lshl_add_u32 v{vt3}, v{vt2}, 3, v{vt3}", f"v_and_b32 v{vt2}, 3, v{vLane}", f"v_lshl_add_u32 v{vt3}, v{vt2}, 10, v{vt3}"]

    def q_addr(self, layer):
        e = self.e
        e(f"s_add_u32 s{sT2}, s{sQld}, {Q_SZ}")
        e(f"v_lshrrev_b32 v{vt0}, 4, v{vLane}"); e(f"v_lshlrev_b32 v{vt0}, 7, v{vt0}")
        e(f"v_and_b32 v{vt1}, 7, v{vLane}"); e(f"v_lshl_add_u32 v{vt0}, v{vt1}, 4, v{vt0}")
    def q_load(self): return f"buffer_load_dwordx4 {vq(72)}, v{vt0}, {srd(SWS)}, s{sT2} offen sc1"

    Q, D, MA, MB, KB = 72, 88, 100, 104, 108
    def merge_s(self, T, r):
        M = self.MA if T < 8 else self.MB
        v = T % 8
        src = self.D + 4 * (T % 3) + r
        return f"v_mov_b32 v{M+r}, v{src}" if v == 0 else f"v_mov_b32_dpp v{M+r}, v{src} row_shr:{2*v} {DPP}"

    def q_expand(self):
        return [f"v_mov_b32_dpp v{self.Q+4*jj+r}, v{self.Q+r} row_shl:{2*jj} {DPP}" for jj in range(1, 4) for r in range(4)]

    def k15_reads(self):
        e = self.e
        e(f"s_lshl_b32 s{sT1}, s{sW}, 12"); e(f"s_add_u32 s{sT1}, s{sT1}, {K15_BASE}"); e(f"v_add_u32 v{vt1}, s{sT1}, v{vL16}")
        for jj in range(4): e(f"ds_read_b128 {vq(self.KB+4*jj)}, v{vt1} offset:{1024*jj}")

    def qk_tiles(self, tiles, pre=None):
        e = self.e
        for T in tiles:
            if pre and T in pre: pre[T]()
            d = vq(self.D + 4 * (T % 3))
            for jj in range(4):
                aop = f"a[{16*T+4*jj}:{16*T+4*jj+3}]" if T < 15 else vq(self.KB + 4 * jj)
                e(f"{MFMA} {d}, {aop}, {vq(self.Q+4*jj)}, {'0' if jj == 0 else d}")
                if T >= 2: e(self.merge_s(T - 2, jj))

    m_, l_ = vt1, vx5
    PK, BR, BL, AC = 120, 104, 108, 72
    VB = [112, 116, 124, 12]
    def softmax(self, extra=None):
        e = self.e
        MA, MB, m, l = self.MA, self.MB, self.m_, self.l_
        t = 88
        for r in range(4): e(self.merge_s(14, r))
        for i in (extra or []): e(i)
        e(f"v_max3_f32 v{m}, v{MA}, v{MA+1}, v{MA+2}")
        for r in range(4): e(self.merge_s(15, r))
        e(f"v_max3_f32 v{t}, v{MA+3}, v{MB}, v{MB+1}")
        e(f"v_max3_f32 v{m}, v{m}, v{MB+2}, v{MB+3}")
        e(f"v_max_f32 v{m}, v{m}, v{t}")
        for sh in (2, 4, 8): e(f"v_max_f32_dpp v{m}, v{m}, v{m} row_ror:{sh} {DPP}")
        for i in self.xrow_all(m, t, "v_max_f32"): e(i)
        e(f"v_mul_f32 v{m}, s{sC}, v{m}")
        for i in range(8): e(f"v_fma_f32 v{MA+i}, v{MA+i}, s{sC}, -v{m}")
        for i in range(8): e(f"v_exp_f32 v{MA+i}, v{MA+i}")
        for i in range(4): e(f"v_cvt_pk_bf16_f32 v{self.PK+i}, v{MA+2*i}, v{MA+2*i+1}")
        e(f"v_add_f32 v{l}, v{MB}, v{MB+1}"); e(f"v_add_f32 v{t}, v{MB+2}, v{MB+3}")
        e(f"v_add_f32 v{l}, v{l}, v{t}")
        return [f"v_add_f32 v{l}, v{l}, v{MA}", f"v_add_f32 v{l}, v{l}, v{MA+1}", f"v_add_f32 v{l}, v{l}, v{MA+2}", f"v_add_f32 v{l}, v{l}, v{MA+3}"]

    def bop(self, p, dst):
        out = []
        for u in range(2):
            tile = 2 * p + u
            pk = self.PK + (0 if tile < 8 else 2)
            sh = 2 * (tile % 8)
            for i in range(2):
                d = dst + 2 * u + i
                out.append(f"v_mov_b32 v{d}, v{pk+i}" if sh == 0 else f"v_mov_b32_dpp v{d}, v{pk+i} row_shl:{sh} {DPP}")
        return out

    def vread(self, p, t, buf, mode):
        if mode == "f":
            return [f"ds_read_b128 {vq(buf)}, v{vt0} offset:{(2*p-8)*4096 + t*1024}"]
        out = []
        ad = vTR0
        if t: out.append(f"v_xor_b32 v{vt0}, {t << 5}, v{vTR0}"); ad = vt0
        return out + [f"ds_read_b64_tr_b16 {vp(buf+2*u)}, v{ad} offset:{(2*p-8+u)*4096}" for u in range(2)]

    def pv(self, seq, modes, lsum, hooks=None):
        e = self.e
        hooks = hooks or {}
        VB = self.VB
        lds = [(p, t) for p, t in seq if p >= 4]
        nrd = lambda i: 1 if modes[lds[i][0]] == "f" else 2
        st = self.pvst
        seen = set(); lastuse = {}; firstuse = {}
        for i, (p, t) in enumerate(seq):
            lastuse[p] = i; firstuse.setdefault(p, i)
        acc_last = {}
        for i, (p, t) in enumerate(seq): acc_last[t] = i
        slot = lambda p: self.BL if p >= 4 else self.BR
        order = sorted(firstuse, key=lambda p: firstuse[p])
        fillers = {i: [] for i in range(len(seq) + 1)}
        prev = {}
        for p in order:
            s = slot(p)
            if s in prev:
                start = lastuse[prev[s]]
                ops = self.bop(p, s)
                gap = firstuse[p] - start
                for k, o in enumerate(ops):
                    fillers[start + min(k * max(gap - 1, 1) // 4, max(gap - 2, 0))].append(o)
            prev[s] = p
        lastbop = max([0] + [i for i in fillers if fillers[i]])
        for k, o in enumerate(lsum): fillers[k].append(o)
        pend = []
        for t in sorted(acc_last, key=lambda t: acc_last[t]):
            pend.append((max(acc_last[t] + 5, lastbop + 1), t))
        assert [t for _, t in pend] == list(range(8))
        li = 0
        mq = []
        for i, (p, t) in enumerate(seq):
            if i in hooks: hooks[i]()
            acc = vq(self.AC + 4 * t)
            if p >= 4:
                younger = sum(nrd(x) for x in range(li + 1, st["issued"]))
                if st.get("lastwait") != (li, younger): e(f"s_waitcnt lgkmcnt({younger})")
                aop = vq(VB[li % len(VB)])
            else:
                aop = vq(128 + 32 * p + 4 * t)
            e(f"{MFMA} {acc}, {aop}, {vq(slot(p))}, {'0' if t not in seen else acc}")
            seen.add(t)
            if p >= 4:
                nx = st["issued"]
                if nx < len(lds) and lds[nx][0] not in st["blocked"]:
                    if modes[lds[nx][0]] == "f" and st.get("mode") != "f":
                        e(f"v_add_u32 v{vt0}, s{sVlds}, v{vL16}"); st["mode"] = "f"
                    if modes[lds[nx][0]] == "t": st["mode"] = "t"
                    for o in self.vread(*lds[nx], VB[li % len(VB)], modes[lds[nx][0]]): e(o)
                    st["issued"] += 1
                li += 1
            for o in fillers[i]: e(o)
            while pend and pend[0][0] <= i:
                t2 = pend.pop(0)[1]
                mq += [(f"v_mov_b32 v{self.PK+r}, v{self.AC+r}" if t2 == 0 else f"v_mov_b32_dpp v{self.PK+r}, v{self.AC+4*t2+r} row_shr:{2*t2} {DPP}") for r in range(4)]
            for _ in range(2):
                if mq: e(mq.pop(0))
        l, tmp = self.l_, self.BR
        tail = [f"v_add_f32_dpp v{l}, v{l}, v{l} row_ror:{sh} {DPP}" for sh in (2, 4, 8)] + self.xrow_all(l, tmp, "v_add_f32")
        for _, t2 in pend:
            mq += [f"v_mov_b32_dpp v{self.PK+r}, v{self.AC+4*t2+r} row_shr:{2*t2} {DPP}" for r in range(4)]
        while tail or mq:
            if tail: e(tail.pop(0))
            if mq and len(tail) < 6: e(mq.pop(0))
            if mq and len(tail) < 6: e(mq.pop(0))

    def pv_prefetch(self, seq, modes, blocked=()):
        lds = [(p, t) for p, t in seq if p >= 4]
        self.pvst = dict(issued=0, blocked=set(blocked), mode=None)
        out = []
        for i in range(len(self.VB)):
            p, t = lds[i]
            if modes[p] == "f" and self.pvst["mode"] != "f":
                out.append(f"v_add_u32 v{vt0}, s{sVlds}, v{vL16}"); self.pvst["mode"] = "f"
            if modes[p] == "t": self.pvst["mode"] = "t"
            out += self.vread(p, t, self.VB[i], modes[p])
            self.pvst["issued"] += 1
        return out

    def pv_unblock(self, seq, modes, li):
        e = self.e
        lds = [(p, t) for p, t in seq if p >= 4]
        st = self.pvst
        st["blocked"] = set()
        for i in range(len(self.VB)):
            nx = st["issued"]
            for o in self.vread(*lds[nx], self.VB[(li + i) % len(self.VB)], modes[lds[nx][0]]): e(o)
            st["issued"] += 1

    def combine(self, layer):
        e = self.e
        OM, m, l = self.PK, self.m_, self.l_
        e(f"s_lshl_b32 s{sT0}, s{sW}, 10"); e(f"s_add_u32 s{sT0}, s{sT0}, {SH_BASE}")
        e(f"v_add_u32 v{vt0}, s{sT0}, v{vL16}")
        e(f"ds_write_b128 v{vt0}, {vq(OM)}")
        e(f"v_and_b32 v{vt2}, 1, v{vLane}"); e(f"v_lshlrev_b32 v{vt2}, 3, v{vt2}"); e(f"v_add_u32 v{vt2}, {SH_BASE+4096}, v{vt2}")
        e(f"s_lshl_b32 s{sT0}, s{sW}, 4"); e(f"v_add_u32 v{vt3}, s{sT0}, v{vt2}")
        e("s_mov_b64 exec, 3")
        e(f"ds_write2_b32 v{vt3}, v{m}, v{l} offset0:0 offset1:1")
        e("s_mov_b64 exec, -1")
        e("s_waitcnt lgkmcnt(0)"); e("s_barrier")
        lskip = self.if_wave(("eq", 0))
        ML, OW = 76, 84
        for w in range(4): e(f"ds_read_b64 {vp(ML+2*w)}, v{vt2} offset:{16*w}")
        for w in range(1, 4): e(f"ds_read_b128 {vq(OW+4*(w-1))}, v{vt0} offset:{1024*w}")
        e(f"v_and_b32 v{vt2}, 1, v{vLane}"); e(f"v_lshlrev_b32 v{vt2}, 12, v{vt2}")
        e(f"v_bfe_u32 v{vt3}, v{vLane}, 2, 2"); e(f"v_lshl_add_u32 v{vt2}, v{vt3}, 10, v{vt2}")
        e(f"v_bfe_u32 v{vt3}, v{vLane}, 1, 1"); e(f"v_lshl_add_u32 v{vt2}, v{vt3}, 9, v{vt2}")
        e(f"v_lshrrev_b32 v{vt3}, 5, v{vLane}"); e(f"v_lshl_add_u32 v{vt2}, v{vt3}, 8, v{vt2}")
        e(f"v_bfe_u32 v{vt3}, v{vLane}, 4, 1"); e(f"v_lshl_add_u32 v{vt2}, v{vt3}, 3, v{vt2}")
        e(f"s_add_u32 s{sT0}, s{sOst}, {layer*O_SZ}"); e(f"s_add_u32 s{sT3}, s{sMLst}, {layer*ML_SZ}")
        e(f"v_mov_b32 v{vt4}, 0")
        e("s_waitcnt lgkmcnt(3)")
        M, Lr = 96, 97
        e(f"v_max3_f32 v{M}, v{ML}, v{ML+2}, v{ML+4}"); e(f"v_max_f32 v{M}, v{M}, v{ML+6}")
        for w in range(4): e(f"v_sub_f32 v{ML+2*w}, v{ML+2*w}, v{M}")
        for w in range(4): e(f"v_exp_f32 v{ML+2*w}, v{ML+2*w}")
        e(f"v_mul_f32 v{Lr}, v{ML}, v{ML+1}")
        for w in range(1, 4): e(f"v_fmac_f32 v{Lr}, v{ML+2*w}, v{ML+2*w+1}")
        e(f"v_rcp_f32 v{vt3}, v{Lr}")
        for r in range(4): e(f"v_mul_f32 v{OM+r}, v{ML}, v{OM+r}")
        e("s_waitcnt lgkmcnt(0)")
        for w in range(1, 4):
            for r in range(4): e(f"v_fmac_f32 v{OM+r}, v{ML+2*w}, v{OW+4*(w-1)+r}")
        for r in range(4): e(f"v_mul_f32 v{OM+r}, v{vt3}, v{OM+r}")
        e(f"v_mov_b32_dpp v{M+2}, v{M} quad_perm:[1,1,1,1] {DPP}"); e(f"v_mov_b32_dpp v{M+3}, v{Lr} quad_perm:[1,1,1,1] {DPP}")
        e(f"v_cvt_pk_bf16_f32 v{OM}, v{OM}, v{OM+1}"); e(f"v_cvt_pk_bf16_f32 v{OM+1}, v{OM+2}, v{OM+3}")
        self.pub_local([f"buffer_store_dwordx2 {vp(OM)}, v{vt2}, {srd(SWS)}, s{sT0} offen", "s_mov_b64 exec, 1",
                        f"buffer_store_dwordx4 {vq(M)}, v{vt4}, {srd(SWS)}, s{sT3} offen"])
        e("s_mov_b64 exec, -1")
        self.L(lskip)
        e("s_barrier")
        self.stamp("o_pub")

    def wo_role(self, layer):
        e = self.e
        B, AC, MLR, G = 72, 104, 120, 104
        e(f"s_sub_u32 s{sT4}, s{sj}, 18"); e(f"s_mul_i32 s{sCt}, s{sT4}, 3"); e(f"s_add_u32 s{sCt}, s{sCt}, s{sW}"); e(f"s_sub_u32 s{sCt}, s{sCt}, 1")
        l = self.if_wave(("ne", 0))
        self.rs_pre(None if layer == 0 else X_OFF + X_SZ, X_OFF + 2 * layer * X_SZ)
        self.L(l)
        e(f"s_lshl_b32 s{sT0}, s{sHalf}, 13"); e(f"s_add_u32 s{sT0}, s{sT0}, s{sL}"); e(f"s_add_u32 s{sT0}, s{sT0}, {O_OFF + layer*O_SZ}")
        e(f"s_lshl_b32 s{sT1}, s{sW}, 11"); e(f"s_add_u32 s{sT0}, s{sT0}, s{sT1}")
        e(f"s_add_u32 s{sT2}, s{sT1}, {SH_BASE}"); e(f"v_add_u32 v{vt0}, s{sT2}, v{vL16}")
        e(f"v_and_b32 v{vt1}, 0xff, v{vL16}")
        e(f"s_add_u32 s{sT1}, s{sT1}, {ST_BASE}"); e(f"v_add_u32 v126, s{sT1}, v{vt1}")
        e(f"v_add_u32 v127, {SH_BASE}, v{vL16}")
        e(f"v_lshrrev_b32 v{vx5}, 4, v{vLane}"); e(f"v_lshlrev_b32 v{vx5}, 6, v{vx5}")
        e(f"v_and_b32 v{vt4}, 3, v{vLane}"); e(f"v_lshl_add_u32 v{vx5}, v{vt4}, 4, v{vx5}")
        e(f"s_add_u32 s{sT3}, s{sYst}, {2*layer*Y_SZ}")
        ld = [f"buffer_load_dwordx4 {vq(G+4*i)}, v{vL16}, {srd(SWS)}, s{sT0} offen offset:{1024*i} sc1" for i in range(2)]
        chk = [G, G + 2, G + 4, G + 6]
        lo, ldn = self.lab("Lwoo"), self.lab("Lwod")
        e(f"s_cmp_eq_u32 s{sW}, 0"); e(f"s_cbranch_scc0 {lo}")
        e(f"s_lshl_b32 s{sT2}, s{sHalf}, 8"); e(f"s_add_u32 s{sT2}, s{sT2}, s{sL}"); e(f"s_add_u32 s{sT2}, s{sT2}, {ML_OFF + layer*ML_SZ}")
        e(f"v_lshrrev_b32 v{vt2}, 4, v{vLane}"); e(f"v_lshl_add_u32 v{vt2}, v{vt2}, 11, v{vt1}"); e(f"v_add_u32 v{vt2}, {ST_BASE}, v{vt2}")
        self.poll(ld + [f"buffer_load_dwordx4 {vq(G+8)}, v{vt1}, {srd(SWS)}, s{sT2} offen sc1"], chk + [G + 8])
        e(f"ds_write_b128 v{vt2}, {vq(G+8)}")
        e(f"s_branch {ldn}")
        self.L(lo)
        self.poll(ld, chk)
        self.L(ldn)
        self.stamp("o_got")
        e(f"ds_write_b128 v{vt0}, {vq(G)}"); e(f"ds_write_b128 v{vt0}, {vq(G+4)} offset:1024")
        e("s_waitcnt lgkmcnt(0)"); e("s_barrier")
        e(f"ds_read_b128 {vq(MLR)}, v126")
        for ks in range(8): e(f"ds_read_b128 {vq(B+4*ks)}, v127 offset:{1024*ks}")
        m0, l0, m1, l1 = MLR, MLR + 1, MLR + 2, MLR + 3
        t0, t1 = 124, 125
        wts = [f"v_max_f32_dpp v{t0}, v{m0}, v{m0} row_ror:4 {DPP}", f"v_max_f32_dpp v{t1}, v{m1}, v{m1} row_ror:4 {DPP}",
               f"v_max_f32_dpp v{t0}, v{t0}, v{t0} row_ror:8 {DPP}", f"v_max_f32_dpp v{t1}, v{t1}, v{t1} row_ror:8 {DPP}",
               f"v_sub_f32 v{m0}, v{m0}, v{t0}", f"v_sub_f32 v{m1}, v{m1}, v{t1}", f"v_exp_f32 v{m0}, v{m0}", f"v_exp_f32 v{m1}, v{m1}",
               f"v_mul_f32 v{m0}, v{m0}, v{l0}", f"v_mul_f32 v{m1}, v{m1}, v{l1}",
               f"v_add_f32_dpp v{t0}, v{m0}, v{m0} row_ror:4 {DPP}", f"v_add_f32_dpp v{t1}, v{m1}, v{m1} row_ror:4 {DPP}",
               f"v_add_f32_dpp v{t0}, v{t0}, v{t0} row_ror:8 {DPP}", f"v_add_f32_dpp v{t1}, v{t1}, v{t1} row_ror:8 {DPP}",
               f"v_rcp_f32 v{t0}, v{t0}", f"v_rcp_f32 v{t1}, v{t1}", f"v_mul_f32 v{m0}, v{m0}, v{t0}", f"v_mul_f32 v{m1}, v{m1}, v{t1}"]
        e("s_waitcnt lgkmcnt(8)")
        for i in wts[:4]: e(i)
        wts = wts[4:]
        def fin(ti):
            a0, a1 = AC + 8 * ti, AC + 8 * ti + 4
            o = [f"v_mul_f32 v{a0+r}, v{m0}, v{a0+r}" for r in range(4)] + [f"v_fmac_f32 v{a0+r}, v{m1}, v{a1+r}" for r in range(4)]
            o += [f"v_add_f32_dpp v{a0+r}, v{a0+r}, v{a0+r} row_ror:{sh} {DPP}" for sh in (4, 8) for r in range(4)]
            o += [f"s_mov_b64 exec, s[{sM4}:{sM4+1}]", f"buffer_store_dwordx4 {vq(a0)}, v{vx5}, {srd(SWS)}, s{sT3} offen offset:0 sc1", "s_mov_b64 exec, -1"]
            return o
        for ks in range(8):
            acc = vq(AC + 4 * (ks // 4))
            e(f"s_waitcnt lgkmcnt({7-ks})")
            e(f"{MFMA} {acc}, {R_QUADS[2*ks]}, {vq(B+4*ks)}, {'0' if ks % 4 == 0 else acc}")
            for _ in range(2):
                if wts: e(wts.pop(0))
        lone, lfin = self.lab("Lwo1t"), self.lab("Lwof")
        e(f"s_cmp_ge_u32 s{sW}, 2"); e(f"s_cbranch_scc1 {lone}")
        f0 = fin(0)
        for ks in range(8):
            acc = vq(AC + 8 + 4 * (ks // 4))
            e(f"{MFMA} {acc}, {R_QUADS[2*ks+1]}, {vq(B+4*ks)}, {'0' if ks % 4 == 0 else acc}")
            if ks >= 3:
                for _ in range(3):
                    if f0: e(f0.pop(0))
        for i in f0: e(i)
        e(f"s_add_u32 s{sT3}, s{sT3}, 4096")
        for i in fin(1): e(i)
        e(f"s_branch {lfin}")
        self.L(lone)
        for i in fin(0): e(i)
        self.L(lfin)
        self.stamp("y_pub")
        l = self.if_wave(("ne", 0))
        self.rs_stage(2 * layer, X_OFF + 2 * layer * X_SZ)
        self.L(l)
        self.stamp("x_pub")

    def ffn_role(self, layer):
        e = self.e
        W2Q = [vq(T0 + 4 * i) for i in range(9)]
        AC = 120
        if layer == 0: self.ffn_weights(True, self.opt['n1'] + self.opt['n2'])
        else: self.ffn_weights(False)
        self.stamp("w2_ready")
        xo = X_OFF + 2 * layer * X_SZ
        self.gshare_pre()
        self.gshare_poll(xo, sleep=self.opt["xsleep"])
        self.stamp("x_got", 126, 127)
        self.gshare_write()
        for i in self.stats_reads(12, 116): e(i)
        e(f"v_bfe_u32 v{vx5}, v{vLane}, 2, 1"); e(f"v_lshl_add_u32 v{vx5}, v{vx5}, 8, v{vFrag}")
        fill = self.stats_math(12, 116)
        fill += [f"v_and_b32 v{vt2}, 3, v{vLane}", f"v_lshlrev_b32 v{vt2}, 4, v{vt2}", f"v_bfe_u32 v{vt3}, v{vLane}, 4, 1",
                 f"v_lshl_add_u32 v{vt2}, v{vt3}, 3, v{vt2}", f"v_lshrrev_b32 v{vt3}, 5, v{vLane}", f"v_lshl_add_u32 v{vt2}, v{vt3}, 6, v{vt2}",
                 f"s_lshl_b32 s{sT0}, s{sj}, 9", f"s_lshl_b32 s{sT1}, s{sW}, 7", f"s_add_u32 s{sT0}, s{sT0}, s{sT1}", f"s_add_u32 s{sT0}, s{sT0}, s{sL}",
                 f"s_add_u32 s{sT0}, s{sT0}, {H_OFF + layer*H_SZ}"]
        self.chain2(R_QUADS, vx5, [108, 112], AC, 18, fill=fill, late_ring=116)
        for r in range(4): e(f"v_fma_f32 v{AC+r}, -v{vt0}, v{vCS+r}, v{AC+r}")
        for r in range(4): e(f"v_mul_f32 v{AC+r}, v{vt1}, v{AC+r}")
        lup = self.lab("Lup")
        e(f"s_cmp_eq_u32 s{sHalf}, 0"); e(f"s_cbranch_scc0 {lup}")
        for r in range(4): e(f"v_mul_f32 v{AC+4+r}, {f32(-LOG2E)}, v{AC+r}")
        for r in range(4): e(f"v_exp_f32 v{AC+4+r}, v{AC+4+r}")
        for r in range(4): e(f"v_add_f32 v{AC+4+r}, 1.0, v{AC+4+r}")
        for r in range(4): e(f"v_rcp_f32 v{AC+4+r}, v{AC+4+r}")
        for r in range(4): e(f"v_mul_f32 v{AC+r}, v{AC+r}, v{AC+4+r}")
        self.L(lup)
        e(f"v_cvt_pk_bf16_f32 v{AC}, v{AC}, v{AC+1}"); e(f"v_cvt_pk_bf16_f32 v{AC+1}, v{AC+2}, v{AC+3}")
        e(f"s_mov_b64 exec, s[{sM4}:{sM4+1}]")
        self.pub_local(f"buffer_store_dwordx2 {vp(AC)}, v{vt2}, {srd(SWS)}, s{sT0} offen")
        e("s_mov_b64 exec, -1")
        self.stamp("h_pub")
        last = layer == 1
        e(f"s_lshl_b32 s{sCt}, s{sj}, 1"); e(f"s_add_u32 s{sCt}, s{sCt}, s{sW}")
        l = self.if_wave(("lt", 2))
        self.rs_pre(xo, None if last else xo + X_SZ)
        self.L(l)
        e(f"s_mul_i32 s{sT0}, s{sHalf}, 2304"); e(f"s_add_u32 s{sT0}, s{sT0}, s{sGld}"); e(f"s_add_u32 s{sT0}, s{sT0}, {H_OFF + layer*H_SZ}")
        e(f"s_lshl_b32 s{sT1}, s{sW}, 10"); e(f"s_add_u32 s{sT1}, s{sT1}, {SH_BASE}"); e(f"v_add_u32 v{vt0}, s{sT1}, v{vL16}")
        e(f"v_bfe_u32 v{vx5}, v{vLane}, 2, 1"); e(f"v_lshl_add_u32 v{vx5}, v{vx5}, 8, v{vFrag}")
        e(f"v_lshrrev_b32 v{vt1}, 4, v{vLane}"); e(f"v_lshlrev_b32 v{vt1}, 6, v{vt1}")
        e(f"v_and_b32 v{vt4}, 3, v{vLane}"); e(f"v_lshl_add_u32 v{vt1}, v{vt4}, 4, v{vt1}")
        e(f"s_add_u32 s{sT3}, s{sYst}, {(2*layer+1)*Y_SZ}")
        e("s_barrier")
        lh3, lh2 = self.lab("Lh3"), self.lab("Lh2")
        e(f"s_cmp_eq_u32 s{sW}, 3"); e(f"s_cbranch_scc1 {lh3}")
        e(f"s_cmp_eq_u32 s{sW}, 2"); e(f"s_cbranch_scc0 {lh2}")
        e("s_mov_b64 exec, 0xffff")
        self.L(lh2)
        e(f"s_add_u32 s{sT1}, s{sT0}, 4608")
        self.poll([f"buffer_load_dwordx4 {vq(108)}, v{vL16}, {srd(SWS)}, s{sT0} offen sc1",
                   f"buffer_load_dwordx4 {vq(112)}, v{vL16}, {srd(SWS)}, s{sT1} offen sc1"], [108, 110, 112, 114])
        for r in range(4): e(f"v_and_b32 v{116+r}, 0xffff, v{112+r}")
        for r in range(4): e(f"v_and_b32 v{112+r}, 0xffff0000, v{112+r}")
        for r in range(4): e(f"v_dot2_f32_bf16 v{116+r}, v{108+r}, v{116+r}, 0")
        for r in range(4): e(f"v_dot2_f32_bf16 v{112+r}, v{108+r}, v{112+r}, 0")
        for r in range(4): e(f"v_cvt_pk_bf16_f32 v{108+r}, v{116+r}, v{112+r}")
        e(f"ds_write_b128 v{vt0}, {vq(108)}")
        e("s_mov_b64 exec, -1")
        e("s_waitcnt lgkmcnt(0)")
        self.L(lh3)
        e("s_barrier")
        self.stamp("h_got")
        self.chain2(W2Q, vx5, [108, 112, 116], AC, 9)
        e(f"s_mov_b64 exec, s[{sM4}:{sM4+1}]")
        e(f"buffer_store_dwordx4 {vq(AC)}, v{vt1}, {srd(SWS)}, s{sT3} offen sc1")
        e("s_mov_b64 exec, -1")
        self.stamp("y2_pub")
        if not last:
            lnr, lr2 = self.lab("Lffn"), self.lab("Lffr")
            e(f"s_cmp_ge_u32 s{sW}, 2"); e(f"s_cbranch_scc1 {lnr}")
            self.rs_stage(1, xo + X_SZ)
            e(f"s_branch {lr2}")
            self.L(lnr)
            self.wq_issue(""); e("s_waitcnt vmcnt(0)"); self.wq_finish()
            self.L(lr2)
            self.stamp("x2_pub")
        else:
            e(f"s_cmp_ge_u32 s{sW}, 2"); e("s_cbranch_scc1 L_end")
            e(f"s_and_b32 s{sT0}, s{sCt}, 7"); e(f"s_cmp_eq_u32 s{sT0}, s{sk}"); e("s_cbranch_scc0 L_end")
            self.rs_stage(3, None)
            self.stamp("out")

    def build(self):
        e, a = self.e, self.a
        self.cold = []
        e(f"; @launch grid=(256,1,1) block=(256,1,1) lds={LDS_TOTAL}")
        e('.amdgcn_target "amdgcn-amd-amdhsa--gfx950"')
        e(".text"); e(f".globl {KN}"); e(".p2align 8"); e(f".type {KN},@function")
        a.label(KN)
        e("s_cmp_ge_u32 s2, 256"); e("s_cbranch_scc1 L_end")
        e("s_load_dwordx16 s[72:87], s[0:1], 0")
        e("s_load_dwordx8 s[88:95], s[0:1], 64")
        pX, pK, pV, pWQ, pWO, pW1, pW3, pW2, pOUT, pDBG, pWS = 72, 74, 76, 78, 80, 84, 86, 88, 90, 92, 94
        e("v_lshrrev_b32 v1, 6, v0")
        e(f"v_and_b32 v{vLane}, 63, v0")
        e(f"v_readfirstlane_b32 s{sW}, v1")
        e(f"v_lshlrev_b32 v{vL16}, 4, v{vLane}")
        e(f"v_mov_b32 v{vx5}, 0")
        e(f"s_and_b32 s{sk}, s2, 7"); e(f"s_lshr_b32 s{sj}, s2, 3")
        e(f"s_bfe_u32 s{sT0}, s{sj}, 0x20002"); e(f"s_lshl_b32 s{sT0}, s{sT0}, 4")
        e(f"s_lshl_b32 s{sT1}, s{sk}, 1"); e(f"s_add_u32 s{sT0}, s{sT0}, s{sT1}")
        e(f"s_lshr_b32 s{sT1}, s{sj}, 4"); e(f"s_add_u32 s{sT0}, s{sT0}, s{sT1}"); e(f"s_lshl_b32 s{sKV}, s{sT0}, 20")
        e(f"s_and_b32 s{sT1}, s{sj}, 3"); e(f"s_lshl_b32 s{sT1}, s{sT1}, 14"); e(f"s_add_u32 s{sKV}, s{sKV}, s{sT1}")
        e(f"s_lshl_b32 s{sT1}, s{sW}, 12"); e(f"s_add_u32 s{sKV}, s{sKV}, s{sT1}")
        e(f"s_lshl_b32 s{sVlds}, s{sW}, 15")
        vK, vV0, vV1 = vCS, vCS + 1, vCS + 2
        e(f"v_and_b32 v{vt0}, 15, v{vLane}"); e(f"v_lshrrev_b32 v{vt1}, 4, v{vLane}")
        e(f"v_lshlrev_b32 v{vK}, 8, v{vt0}"); e(f"v_lshl_add_u32 v{vK}, v{vt1}, 4, v{vK}")
        e(f"v_lshlrev_b32 v{vt2}, 1, v{vt1}"); e(f"v_xor_b32 v{vt2}, v{vt2}, v{vt0}")
        e(f"v_lshlrev_b32 v{vV0}, 4, v{vt2}"); e(f"v_lshl_add_u32 v{vV0}, v{vt1}, 8, v{vV0}")
        e(f"v_xor_b32 v{vV1}, 0x80, v{vV0}")
        e("s_waitcnt lgkmcnt(0)")
        def mk(r, p, n):
            e(f"s_mov_b32 s{r}, s{p}"); e(f"s_and_b32 s{r+1}, s{p+1}, 0xffff"); e(f"s_mov_b32 s{r+2}, {n}"); e(f"s_mov_b32 s{r+3}, 0x20000")
        mk(SK, pK, 0x4000000)
        cnt = [0]
        def vm(s):
            e(s); cnt[0] += 1
            return cnt[0]
        def wait_for(idx): e(f"s_waitcnt vmcnt({min(cnt[0] - idx, 63)})")
        kdone, vdone = {}, {}
        def K(T):
            e(f"s_add_u32 s{sT0}, s{sKV}, {T*65536}")
            for jj in range(4):
                if T < 15:
                    kdone[T] = vm(f"buffer_load_dwordx4 a[{16*T+4*jj}:{16*T+4*jj+3}], v{vK}, {srd(SK)}, s{sT0} offen offset:{64*jj}{self.opt.get('kpol', ' nt')}")
                else:
                    e(f"s_lshl_b32 s{sT1}, s{sW}, 12"); e(f"s_add_u32 m0, s{sT1}, {K15_BASE + jj*1024 - 64*jj}")
                    kdone[T] = vm(f"buffer_load_dwordx4 v{vK}, {srd(SK)}, s{sT0} offen offset:{64*jj}{self.opt.get('kpol', ' nt')} lds")
        def V(T):
            e(f"s_add_u32 s{sT0}, s{sKV}, {T*65536}")
            e(f"s_add_u32 m0, s{sVlds}, {(T % 8) * 4096}")
            for i in range(4):
                vdone[T] = vm(f"buffer_load_dwordx4 v{vV0 if i % 2 == 0 else vV1}, {srd(SV)}, s{sT0} offen offset:{1024*i}{self.opt.get('vpol', ' nt')} lds")
        if self.opt["codewarm"]:
            e("s_getpc_b64 s[98:99]")
            a.label("L_pc")
            e(f"s_lshl_b32 s{sT0}, s{sj}, 2"); e(f"s_add_u32 s{sT0}, s{sT0}, s{sW}"); e(f"s_lshl_b32 s{sT0}, s{sT0}, 10")
            lcw = self.lab("Lcw")
            e(f"s_cmp_lt_u32 s{sT0}, L_code_end-L_pc-1024"); e(f"s_cbranch_scc0 {lcw}")
            e(f"v_add_u32 v{vt3}, s{sT0}, v{vL16}")
            e(f"global_load_dwordx4 v[120:123], v{vt3}, s[98:99]")
            self.L(lcw)
        K(0)
        mk(SV, pV, 0x4000000); mk(SWS, pWS, 0x800000)
        K(1)
        mk(SWQ, pWQ, 4718592); mk(SWO, pWO, 4718592); mk(SW1, pW1, 5308416); mk(SW3, pW3, 5308416); mk(SW2, pW2, 5308416)
        mk(SX, pX, 4608); mk(SOUT, pOUT, 4608); mk(SDBG, pDBG, 256)
        if self.stamps:
            e(f"s_lshl_b32 s95, s2, 11"); e(f"s_lshl_b32 s94, s{sW}, 9"); e("s_add_u32 s95, s95, s94"); e(f"s_add_u32 s95, s95, {STAMP_OFF}")
            self.stamp("start"); cnt[0] += 1
        for i in range(4): e(f"v_mov_b32 v{124+i}, -1")
        e(f"s_mul_i32 s{sT0}, s2, {CLR_PER_WG}"); e(f"s_lshl_b32 s{sT1}, s{sW}, 10"); e(f"s_add_u32 s{sT1}, s{sT1}, s{sT0}")
        if not self.opt["skipclr"]: vm(f"buffer_store_dwordx4 v[124:127], v{vL16}, {srd(SWS)}, s{sT1} offen sc1")
        e(f"s_lshl_b32 s{sT1}, s{sW}, 7"); e(f"s_add_u32 s{sT1}, s{sT1}, s{sT0}"); e(f"s_add_u32 s{sT1}, s{sT1}, 4096")
        e("s_mov_b64 exec, 0xff")
        vm(f"buffer_store_dwordx4 v[124:127], v{vL16}, {srd(SWS)}, s{sT1} offen sc1")
        e("s_mov_b64 exec, -1")
        e(f"s_mul_i32 s{sL}, s{sk}, {LREG}")
        e(f"s_lshr_b32 s{sT0}, s{sj}, 4"); e(f"s_lshl_b32 s{sT0}, s{sT0}, 9")
        e(f"s_bfe_u32 s{sQst}, s{sj}, 0x10003"); e(f"s_lshl_b32 s{sQst}, s{sQst}, 4"); e(f"s_add_u32 s{sQst}, s{sQst}, s{sT0}"); e(f"s_add_u32 s{sQst}, s{sQst}, s{sL}")
        e(f"s_mov_b32 s{sM4}, 0x000f000f"); e(f"s_mov_b32 s{sM4+1}, 0x000f000f")
        e(f"s_lshl_b32 s{sQld0}, s{sk}, 14"); e(f"s_add_u32 s{sQld0}, s{sQld0}, {Q0_OFF}")
        e(f"s_bfe_u32 s{sT0}, s{sj}, 0x10002"); e(f"s_lshl_b32 s{sT0}, s{sT0}, 11"); e(f"s_add_u32 s{sQst0}, s{sQld0}, s{sT0}")
        e(f"s_bfe_u32 s{sT0}, s{sj}, 0x10003"); e(f"s_lshl_b32 s{sT0}, s{sT0}, 10"); e(f"s_add_u32 s{sQst0}, s{sQst0}, s{sT0}")
        e(f"s_bfe_u32 s{sT0}, s{sj}, 0x10001"); e(f"s_lshl_b32 s{sT0}, s{sT0}, 4"); e(f"s_add_u32 s{sQst0}, s{sQst0}, s{sT0}")
        e(f"s_bfe_u32 s{sT0}, s{sj}, 0x20002"); e(f"s_lshl_b32 s{sT0}, s{sT0}, 12"); e(f"s_add_u32 s{sQld0}, s{sQld0}, s{sT0}")
        e(f"s_lshr_b32 s{sT0}, s{sj}, 4"); e(f"s_lshl_b32 s{sT0}, s{sT0}, 11"); e(f"s_add_u32 s{sQld0}, s{sQld0}, s{sT0}")
        e(f"s_and_b32 s{sT0}, s{sW}, 1"); e(f"s_lshl_b32 s{sT0}, s{sT0}, 10"); e(f"s_add_u32 s{sQld0}, s{sQld0}, s{sT0}")
        def if_q0():
            l = self.lab("Lnq0"); e(f"s_cmp_lt_u32 s{sj}, {0 if self.opt['nowq0'] else 16}"); e(f"s_cbranch_scc0 {l}"); return l
        l = if_q0()
        for i in self.qp_lane(vt3): e(i)
        e(f"s_mov_b64 exec, s[{sM4}:{sM4+1}]")
        e(f"buffer_store_dwordx4 v[124:127], v{vt3}, {srd(SWS)}, s{sQst0} offen sc1")
        e("s_mov_b64 exec, -1")
        wqg = self.wq0_issue()
        if self.opt["skipwq"]: wqg = [[] for _ in wqg]
        for i in wqg[0]: e(i)
        e(f"v_and_b32 v{vt0}, 3, v{vLane}"); e(f"v_mul_u32_u24 v{vt0}, 1152, v{vt0}")
        e(f"v_lshrrev_b32 v{vt1}, 2, v{vLane}"); e(f"v_lshl_add_u32 v{vt0}, v{vt1}, 4, v{vt0}")
        e(f"s_lshl_b32 s{sT0}, s{sW}, 8")
        e(f"buffer_load_dwordx4 {vq(self.G0)}, v{vt0}, {srd(SX)}, s{sT0} offen")
        e(f"buffer_load_dwordx4 {vq(self.G1)}, v{vt0}, {srd(SX)}, 0 offen offset:1024")
        self.L(l)
        iw = cnt[0]
        wqi = {0: cnt[0]}
        def wq1(n):
            l = if_q0()
            for i in wqg[n]: e(i)
            self.L(l)
            wqi[n] = cnt[0]
        K(2); wq1(1); V(0); wq1(2)
        e(f"s_mov_b32 s{sLimit}, {self.limit}")
        e(f"s_mov_b32 s{sC}, {f32(LOG2E / math.sqrt(128.0))}")
        e(f"s_lshl_b32 s{sGld}, s{sW}, 10"); e(f"s_add_u32 s{sGld}, s{sGld}, s{sL}")
        e(f"s_lshr_b32 s{sT2}, s{sj}, 4")
        e(f"s_bfe_u32 s{sT1}, s{sj}, 0x20002")
        e(f"s_lshl_b32 s{sQld}, s{sT1}, 10"); e(f"s_lshl_b32 s{sT0}, s{sT2}, 9"); e(f"s_add_u32 s{sQld}, s{sQld}, s{sT0}"); e(f"s_add_u32 s{sQld}, s{sQld}, s{sL}")
        e(f"s_and_b32 s{sT0}, s{sj}, 3"); e(f"s_lshl_b32 s{sT0}, s{sT0}, 2"); e(f"s_add_u32 s{sT0}, s{sT0}, s{sT1}"); e(f"s_lshl_b32 s{sT0}, s{sT0}, 4")
        e(f"s_add_u32 s{sT0}, s{sT0}, s{sL}")
        e(f"s_lshl_b32 s{sOst}, s{sT2}, 13"); e(f"s_add_u32 s{sOst}, s{sOst}, s{sT0}"); e(f"s_add_u32 s{sOst}, s{sOst}, {O_OFF}")
        e(f"s_lshl_b32 s{sMLst}, s{sT2}, 8"); e(f"s_add_u32 s{sMLst}, s{sMLst}, s{sT0}"); e(f"s_add_u32 s{sMLst}, s{sMLst}, {ML_OFF}")
        lw, le = self.lab("Lsw"), self.lab("Lse")
        e(f"s_cmp_lt_u32 s{sj}, 18"); e(f"s_cbranch_scc0 {lw}")
        e(f"s_cmp_ge_u32 s{sj}, 9"); e(f"s_cselect_b32 s{sHalf}, 1, 0")
        e(f"s_mul_i32 s{sT1}, s{sHalf}, 9"); e(f"s_sub_u32 s{sT1}, s{sj}, s{sT1}"); e(f"s_lshl_b32 s{sT1}, s{sT1}, 2"); e(f"s_add_u32 s{sT1}, s{sT1}, s{sW}")
        e(f"s_branch {le}")
        self.L(lw)
        e(f"s_cmp_ge_u32 s{sj}, 24"); e(f"s_cselect_b32 s{sHalf}, 1, 0")
        e(f"s_mul_i32 s{sT1}, s{sHalf}, 6"); e(f"s_sub_u32 s{sT1}, s{sj}, s{sT1}"); e(f"s_sub_u32 s{sT1}, s{sT1}, 18"); e(f"s_mul_i32 s{sT1}, s{sT1}, 6")
        e(f"s_lshl_b32 s{sT2}, s{sW}, 1"); e(f"s_add_u32 s{sT0}, s{sW}, 2"); e(f"s_min_u32 s{sT2}, s{sT2}, s{sT0}"); e(f"s_add_u32 s{sT1}, s{sT1}, s{sT2}")
        self.L(le)
        e(f"s_lshl_b32 s{sYst}, s{sT1}, 12"); e(f"s_lshl_b32 s{sT0}, s{sk}, 1"); e(f"s_add_u32 s{sT0}, s{sT0}, s{sHalf}"); e(f"s_lshl_b32 s{sT0}, s{sT0}, 8")
        e(f"s_add_u32 s{sYst}, s{sYst}, s{sT0}"); e(f"s_add_u32 s{sYst}, s{sYst}, {Y_OFF}")
        e(f"v_lshrrev_b32 v{vt0}, 2, v{vLane}")
        e(f"v_and_b32 v{vt1}, 7, v{vt0}"); e(f"v_lshlrev_b32 v{vTR0}, 8, v{vt0}"); e(f"v_lshl_add_u32 v{vTR0}, v{vt1}, 5, v{vTR0}")
        e(f"v_and_b32 v{vt1}, 3, v{vLane}"); e(f"v_lshl_add_u32 v{vTR0}, v{vt1}, 3, v{vTR0}"); e(f"v_add_u32 v{vTR0}, s{sVlds}, v{vTR0}")
        e(f"v_lshrrev_b32 v{vt0}, 4, v{vLane}"); e(f"v_lshlrev_b32 v{vFrag}, 6, v{vt0}"); e(f"v_lshl_add_u32 v{vFrag}, v{vt1}, 4, v{vFrag}")
        e(f"v_add_u32 v{vFrag}, {SH_BASE}, v{vFrag}")
        e(f"s_lshl_b32 s{sT1}, s{sW}, 11"); e(f"s_add_u32 s{sT1}, s{sT1}, {ST_BASE}"); e(f"v_add_u32 v{vStage}, s{sT1}, v{vL16}")
        def vpair_to_regs(p):
            if self.opt["novp"]: return
            wait_for(vdone[2 * p + 1])
            for t in range(8):
                if t == 0: ad = vTR0
                else: e(f"v_xor_b32 v{vt5}, {t << 5}, v{vTR0}"); ad = vt5
                for u in range(2):
                    e(f"ds_read_b64_tr_b16 {vp(128 + 32*p + 4*t + 2*u)}, v{ad} offset:{(2*p+u)*4096}")
            e("s_waitcnt lgkmcnt(0)")
        def if_wo():
            l = self.lab("Lnwo")
            e(f"s_sub_u32 s{sT0}, s{sj}, 18"); e(f"s_cmp_lt_u32 s{sT0}, {0 if self.opt['skipwo'] else 12}"); e(f"s_cbranch_scc0 {l}")
            return l
        R = lambda p, ts: [(p, t) for t in ts]
        lo, hi = range(0, 4), range(4, 8)
        K(3); wq1(3); V(1); wq1(4); K(4); wq1(5); V(2); wq1(6)
        if not self.opt["noarr"]:
            wait_for(iw)
            self.stamp("arrive")
            e("s_barrier")
        l = self.if_wave(("eq", 7 if self.opt["noarr"] else 0))
        e("s_mov_b64 exec, 1")
        e(f"s_getreg_b32 s{sT0}, hwreg(HW_REG_XCC_ID, 0, 3)"); e(f"s_lshl_b32 s{sT0}, s{sT0}, 3"); e(f"s_lshl_b64 s[{sT2+1}:{sT2+2}], 1, s{sT0}")
        e(f"v_mov_b32 v{vt2}, s{sT2+1}"); e(f"v_mov_b32 v{vt3}, s{sT2+2}"); e(f"s_lshl_b32 s{sT1}, s{sk}, 5"); e(f"v_mov_b32 v{vt1}, s{sT1}")
        e(f"buffer_atomic_add_x2 {vp(vt2)}, v{vt1}, {srd(SDBG)}, 0 offen sc1")
        e("s_mov_b64 exec, -1")
        self.L(l)
        self.w13_setup()
        lW, lJoin = self.lab("LstreamW"), self.lab("Ljoin")
        e(f"s_cmp_lt_u32 s{sj}, 18"); e(f"s_cbranch_scc0 {lW}")
        cnt0, kd0, vd0 = cnt[0], dict(kdone), dict(vdone)
        for cls in "FW":
            cnt[0] = cnt0; kdone.clear(); kdone.update(kd0); vdone.clear(); vdone.update(vd0)
            F = cls == "F"
            if not F: self.L(lW)
            w13i = [0]
            def w13(n):
                for _ in range(n):
                    g = self.w13_load(w13i[0]); w13i[0] += 1
                    for i in g[:-1]: e(i)
                    vm(g[-1])
            def c(fn):
                l = if_q0() if F else if_wo()
                fn(); self.L(l)
            mark = {}
            def dbg_issue():
                e(f"v_lshlrev_b32 v{vt4}, 5, v{vLane}")
                e("s_mov_b64 exec, 0xff")
                mark["ib"] = vm(f"buffer_load_dwordx2 {vp(vt2)}, v{vt4}, {srd(SDBG)}, 0 offen sc1")
                e("s_mov_b64 exec, -1")
            if F:
                K(5); wq1(7); V(3); wq1(8); c(lambda: (wait_for(wqi[1]), self.wq0_round(0)))
                K(6); c(lambda: (wait_for(wqi[3]), self.wq0_round(1))); V(4); c(lambda: (wait_for(wqi[5]), self.wq0_round(2)))
                K(7); c(lambda: (wait_for(wqi[7]), self.wq0_round(3))); V(5); c(lambda: (wait_for(wqi[8]), self.wq0_round(4)))
                K(8); c(lambda: (self.wq0_round(5), self.gshare_pre(), self.gshare_write())); V(6); c(self.wq0_core)
                self.stamp("wq0_done")
                K(9); vpair_to_regs(0); V(7); vpair_to_regs(1); K(10); w13(self.opt["n1"]); V(8); vpair_to_regs(2); K(11); dbg_issue(); V(9); vpair_to_regs(3); K(12); V(10)
            else:
                c(lambda: (self.wo_issue(), self.wo_loads(range(0, 4)))); K(5); c(lambda: self.wo_loads(range(4, 8))); V(3); c(lambda: self.wo_loads(range(8, 12)))
                K(6); c(lambda: self.wo_loads(range(12, 16))); iwo = cnt[0]
                V(4); K(7); vpair_to_regs(0); V(5); K(8); vpair_to_regs(1); V(6)
                c(lambda: (wait_for(iwo), self.wo_round(0))); K(9); c(lambda: self.wo_round(1)); V(7); c(lambda: self.wo_round(2)); K(10); c(lambda: self.wo_round(3))
                V(8); vpair_to_regs(2); c(lambda: self.wo_round(4)); K(11); c(lambda: self.wo_round(5)); dbg_issue(); V(9); vpair_to_regs(3); c(lambda: self.wo_round(6))
                K(12); c(lambda: self.wo_round(7)); V(10); c(lambda: self.wo_round(8))
            ib = mark["ib"]
            wait_for(ib)
            lp, ld = self.lab("Lbp"), self.lab("Lbd")
            e(f"s_mov_b32 s{sCnt}, 0")
            self.L(lp)
            e("s_mov_b64 exec, 0xff")
            e(f"v_sad_u8 v{vt1}, v{vt2}, 0, 0"); e(f"v_sad_u8 v{vt1}, v{vt3}, 0, v{vt1}")
            e(f"v_cmp_gt_u32 vcc, {0 if self.opt['noarr'] else 32}, v{vt1}"); e(f"s_cbranch_vccz {ld}")
            e("s_sleep 8")
            e(f"v_lshlrev_b32 v{vt4}, 5, v{vLane}")
            e(f"buffer_load_dwordx2 {vp(vt2)}, v{vt4}, {srd(SDBG)}, 0 offen sc1")
            e("s_waitcnt vmcnt(0)")
            e(f"s_add_u32 s{sCnt}, s{sCnt}, 1"); e(f"s_cmp_lt_u32 s{sCnt}, s{sLimit}"); e(f"s_cbranch_scc1 {lp}")
            e(f"s_mov_b32 s{sLimit}, 0")
            self.L(ld)
            e("s_mov_b64 exec, -1")
            self.note("N_dbg", sCnt)
            e(f"v_readlane_b32 s{sT2+1}, v{vt2}, s{sk}"); e(f"v_readlane_b32 s{sT2+2}, v{vt3}, s{sk}")
            e(f"s_bcnt1_i32_b64 s{sLocal}, s[{sT2+1}:{sT2+2}]")
            if self.force_global: e(f"s_mov_b32 s{sLocal}, 2")
            qld = f"buffer_load_dwordx4 {vq(76)}, v{vL16}, {srd(SWS)}, s{sQld0} offen sc1"
            l = self.if_wave(("lt", 2)); e(qld); self.L(l)
            iq = cnt[0]
            e(f"s_mul_i32 s{sT0}, s{sj}, 2304"); e(f"s_add_u32 s{sT0}, s{sT0}, s{sL}"); e(f"s_mul_i32 s{sT1}, s{sW}, 576"); e(f"s_add_u32 s{sT0}, s{sT0}, s{sT1}")
            e("s_mov_b32 exec_hi, 15")
            vm(f"buffer_load_dwordx4 v[124:127], v{vL16}, {srd(SWS)}, s{sT0} offen sc1")
            e("s_mov_b64 exec, -1")
            K(13); V(11)
            if not self.opt["novp"]:
                wait_for(vdone[9])
                self.convert_pair(4, 80)
            K(14); V(12)
            if not self.opt["novp"]:
                wait_for(vdone[11])
                e("s_waitcnt lgkmcnt(0)")
                self.convert_pair(5, 80)
            else: wait_for(iq)
            l = self.if_wave(("lt", 2))
            lqok = self.lab("Lqok")
            e(f"s_mov_b32 s{sCnt}, -1")
            e(f"v_cmp_eq_u32 vcc, -1, v76"); e(f"s_cbranch_vccz {lqok}")
            if self.opt["noq"]: e(f"s_branch {lqok}")
            self.poll([qld], [76])
            self.L(lqok)
            self.note("N_q", sCnt)
            e(f"ds_write_b128 v{vStage}, {vq(76)}")
            e("s_waitcnt lgkmcnt(0)")
            self.L(l)
            e("s_waitcnt lgkmcnt(0)")
            if not self.opt["noq"]: e("s_barrier")
            e(f"v_add_u32 v{vt0}, {ST_BASE}, v{vL16}")
            e(f"ds_read_b128 {vq(76)}, v{vt0}"); e(f"ds_read_b128 {vq(80)}, v{vt0} offset:2048")
            e("s_waitcnt lgkmcnt(0)")
            for r in range(4): e(f"v_add_f32 v{76+r}, v{76+r}, v{80+r}")
            for r in range(4): e(f"v_mov_b32_dpp v{80+r}, v{76+r} row_shl:8 {DPP}")
            for r in range(4): e(f"v_cvt_pk_bf16_f32 v{72+r}, v{76+2*r}, v{77+2*r}")
            for i in self.q_expand(): e(i)
            self.qk_tiles(range(0, 6))
            K(15); V(13)
            self.qk_tiles(range(6, 12))
            V(14); V(15)
            self.stamp("issued")
            def pre15():
                wait_for(kdone[15]); self.k15_reads(); e("s_waitcnt lgkmcnt(0)")
            self.qk_tiles(range(12, 16), pre={13: lambda: wait_for(kdone[13]), 14: lambda: wait_for(kdone[14]), 15: pre15})
            seq = []
            for p in range(3): seq += R(p, lo) + R(p + 4, lo) + R(p, hi) + R(p + 4, hi)
            seq += R(3, range(8)) + R(7, range(8))
            modes = {4: "f", 5: "f", 6: "t", 7: "t"}
            lsum = self.softmax(extra=self.pv_prefetch(seq, modes, blocked=[7]))
            for i in self.bop(0, self.BR) + self.bop(4, self.BL): e(i)
            self.stamp("sm_done", 88, 89)
            def h7():
                wait_for(vdone[15])
                self.stamp("kv_done", 124, 125)
                self.pv_unblock(seq, modes, 24)
            hooks = {28: lambda: wait_for(vdone[13]), 56: h7}
            if F:
                n2 = self.opt["n2"]
                for q in range(n2 if n2 else 0):
                    idx = 2 + q * (52 // n2)
                    if idx == 28: idx = 29
                    hooks[idx] = lambda: w13(1)
            self.pv(seq, modes, lsum, hooks=hooks)
            self.stamp("pv_done")
            if F: e(f"s_branch {lJoin}")
        self.L(lJoin)
        for layer in range(2):
            self.layer = layer
            self.combine(layer)
            if self.opt["stopat"] == "o_pub":
                self.layer = 1; self.stamp("out"); e("s_endpgm"); break
            lffn, lidle, lwq = self.lab("Lffn"), self.lab("Lidle"), self.lab("Lwq")
            e(f"s_cmp_lt_u32 s{sj}, 18"); e(f"s_cbranch_scc1 {lffn}")
            e(f"s_cmp_lt_u32 s{sj}, 30"); e(f"s_cbranch_scc0 {lidle}")
            self.wo_role(layer)
            self.L(lidle)
            if layer == 1:
                e("s_endpgm")
            else:
                e(f"s_sub_u32 s{sT0}, s{sj}, 18"); e(f"s_lshl_b32 s{sT0}, s{sT0}, 2"); e(f"s_add_u32 s{sT0}, s{sT0}, s{sW}")
                e(f"s_mul_i32 s{sT0}, s{sT0}, {12*8192}"); e(f"s_lshl_b32 s{sT1}, s{sk}, 10"); e(f"s_add_u32 s{sT0}, s{sT0}, s{sT1}")
                e(f"v_lshrrev_b32 v{vt0}, 5, v{vLane}"); e(f"v_lshlrev_b32 v{vt0}, 13, v{vt0}"); e(f"v_and_b32 v{vt1}, 0x1ff, v{vL16}"); e(f"v_add_u32 v{vt0}, v{vt0}, v{vt1}")
                for i in range(6):
                    if i: e(f"s_add_u32 s{sT0}, s{sT0}, {2*8192}")
                    e(f"buffer_load_dwordx4 v[124:127], v{vt0}, {srd(SWQ)}, s{sT0} offen")
                l = self.if_wave(("ge", 2))
                self.wq_issue(""); e("s_waitcnt vmcnt(0)"); self.wq_finish()
                self.L(l)
                e("s_waitcnt vmcnt(0)")
                e(f"s_branch {lwq}")
            self.L(lffn)
            self.ffn_role(layer)
            if layer == 0:
                self.L(lwq)
                e("s_barrier")
                self.gshare_pre()
                self.gshare_poll(X_OFF + X_SZ, sleep=self.opt["xsleep"])
                self.stamp("x2_got", 126, 127)
                self.gshare_write()
                self.wq_core(1)
                self.stamp("q_pub")
                self.layer = 1
                self.q_addr(1)
                self.k15_reads()
                self.poll([self.q_load()], [72, 74])
                self.stamp("q_got")
                qe = self.q_expand()
                for i in qe: e(i)
                self.qk_tiles(range(16), pre={15: lambda: e("s_waitcnt lgkmcnt(0)")})
                self.stamp("qk_done")
                seq = []
                for p in range(3): seq += R(p, lo) + R(p + 4, lo) + R(p, hi) + R(p + 4, hi)
                for tt in range(0, 8, 2): seq += R(3, [tt, tt + 1]) + R(7, [tt, tt + 1])
                modes = {4: "f", 5: "f", 6: "t", 7: "t"}
                lsum = self.softmax(extra=self.pv_prefetch(seq, modes))
                for i in self.bop(0, self.BR) + self.bop(4, self.BL): e(i)
                self.stamp("sm_done", 88, 89)
                self.pv(seq, modes, lsum)
                self.stamp("pv_done")
        a.label("L_end")
        e("s_endpgm")
        for l1, ins, l2 in self.cold:
            self.L(l1)
            for i in ins: e(i)
            e(f"s_branch {l2}")
        a.label("L_code_end")
        e('.section .rodata,"a"'); e(".p2align 6"); e(f".amdhsa_kernel {KN}")
        for d in ("next_free_vgpr 512", "next_free_sgpr 102", "accum_offset 256", "group_segment_fixed_size 0", "kernarg_size 96",
                  "user_sgpr_count 2", "user_sgpr_kernarg_segment_ptr 1", "system_sgpr_workgroup_id_x 1"):
            e(f".amdhsa_{d}")
        e(".end_amdhsa_kernel")
        return a.finish()


if __name__ == "__main__":
    import argparse
    ap = argparse.ArgumentParser()
    ap.add_argument("-o", default="k.s")
    ap.add_argument("--stamps", action="store_true")
    ap.add_argument("--global", dest="fg", action="store_true")
    ap.add_argument("--limit", type=lambda x: int(x, 0), default=0x200000)
    ap.add_argument("--opt", action="append", default=[])
    args = ap.parse_args()
    opt = {}
    for o in args.opt:
        k, v = o.split("=", 1); opt[k] = eval(v)
    g = Gen(stamps=args.stamps, force_global=args.fg, limit=args.limit, **opt)
    open(args.o, "w").write(g.build())
    if args.stamps: json.dump(g.stamp_names, open(args.o + ".names", "w"))
    print("nops", g.a.nnop, "lines", len(g.a.lines))
```
